```python
import torch

def _softmax(x, axis=-1):
    return torch.softmax(x, dim=axis)
def _gelu(x):
    return torch.nn.functional.gelu(x, approximate="tanh")
def _silu(x):
    return torch.nn.functional.silu(x)
def _sigmoid(x):
    return torch.sigmoid(x)
def _layernorm(x, axis=-1, eps=1e-5):
    m = x.mean(dim=axis, keepdim=True)
    v = x.var(dim=axis, keepdim=True, unbiased=False)
    return (x - m) / torch.sqrt(v + eps)
def _scatter_add(tgt, idx, src, axis=0):
    return tgt.clone().index_add_(axis, idx, src)
def _segment_sum(src, seg, n):
    out = torch.zeros((n,) + src.shape[1:], dtype=src.dtype)
    return out.index_add_(0, seg, src)
def _pad(x, pw):
    flat = tuple(v for pair in reversed(pw) for v in pair)
    return torch.nn.functional.pad(x, flat)

kernel_name = 'standalone__mha_block_cached__near_ridge'

def setup_inputs():

    _w = (lambda a: (lambda t: t.to(torch.bfloat16) if t.is_floating_point() else t)(torch.as_tensor(a)))
    B, Sq, D = 16, 144, 576
    H, Sk, Dh = 32, 1024, 128
    return {
        "x": _w((lambda *s: torch.randn(*s, dtype=torch.bfloat16) * 0.8)(B, Sq, D)),
        "k_cache": _w((lambda *s: torch.randn(*s, dtype=torch.bfloat16) * 0.8)(B, H, Sk, Dh)),
        "v_cache": _w((lambda *s: torch.randn(*s, dtype=torch.bfloat16) * 0.05)(B, H, Sk, Dh)),
        "wq": _w((lambda *s: torch.randn(*s, dtype=torch.bfloat16) * 0.8)(D, H * Dh) * (D ** -0.5)),
        "wo": _w((lambda *s: torch.randn(*s, dtype=torch.bfloat16) * 0.05)(H * Dh, D) * ((H * Dh) ** -0.5)),
    }

def reference(x, k_cache, v_cache, wq, wo):
    B, Sq, D = x.shape
    H, Dh = 32, 128
    q = (lambda x, *d: x.permute(*d))((x @ wq).reshape(B, Sq, H, Dh), 0, 2, 1, 3)
    scores = torch.einsum("bhqd,bhkd->bhqk", q, k_cache) * (Dh ** -0.5)
    p = _softmax(scores, axis=-1)
    o = torch.einsum("bhqk,bhkd->bhqd", p, v_cache)
    return (lambda x, *d: x.permute(*d))(o, 0, 2, 1, 3).reshape(B, Sq, H * Dh) @ wo
```

```python
import re, sys

REG_RE = re.compile(r'^(-|\|)?(abs\()?([vsa])(\d+)\)?\|?$')
RNG_RE = re.compile(r'^(-)?([vsa])\[(\d+):(\d+)\]$')

def regs_of(op):
    op = op.strip()
    if op in ('vcc',): return ['vcc_lo', 'vcc_hi']
    if op in ('vcc_lo', 'vcc_hi', 'm0', 'scc'): return [op]
    if op == 'exec': return ['exec']
    m = RNG_RE.match(op)
    if m:
        return [f"{m.group(2)}{i}" for i in range(int(m.group(3)), int(m.group(4)) + 1)]
    m = REG_RE.match(op)
    if m:
        return [f"{m.group(3)}{m.group(4)}"]
    return []

TRANS = ('v_exp_f32', 'v_log_f32', 'v_rcp_f32', 'v_rsq_f32', 'v_sqrt_f32', 'v_sin_f32', 'v_cos_f32')

class Inst:
    def __init__(self, text, comment=None):
        self.text = text.strip()
        self.comment = comment
        t = self.text.split(';')[0].strip()
        parts = t.split(None, 1)
        self.op = parts[0]
        rest = parts[1] if len(parts) > 1 else ''
        ops = []; cur = ''; depth = 0
        for ch in rest:
            if ch in '[(': depth += 1
            if ch in '])': depth -= 1
            if ch == ',' and depth == 0:
                ops.append(cur.strip()); cur = ''
            else:
                cur += ch
        if cur.strip(): ops.append(cur.strip())
        self.mods = []
        if ops:
            toks = ops[-1].split()
            ops[-1] = toks[0]
            self.mods = toks[1:]
        self.ops = ops
        self.classify()

    def classify(self):
        op = self.op; ops = self.ops
        base = re.sub(r'_(e32|e64|dpp|sdwa)$', '', op)
        self.base = base
        self.reads = []; self.writes = []
        self.kind = 'other'
        self.srcc = []; self.srcab = []
        self.target = None
        R = lambda o: regs_of(o)
        if op.startswith('v_mfma'):
            self.kind = 'mfma'
            self.writes = R(ops[0]); self.srcab = R(ops[1]) + R(ops[2]); self.srcc = R(ops[3])
            self.reads = self.srcab + self.srcc
            self.passes = 8 if '32x32' in op else 4
        elif op.startswith('v_'):
            self.kind = 'valu'
            if base.startswith('v_permlane') and 'swap' in base:
                self.writes = R(ops[0]) + R(ops[1]); self.reads = R(ops[0]) + R(ops[1])
            elif base.startswith('v_cmp'):
                self.writes = R(ops[0]); self.reads = sum([R(o) for o in ops[1:]], [])
            elif base in ('v_add_co_u32', 'v_sub_co_u32', 'v_addc_co_u32', 'v_subb_co_u32'):
                self.writes = R(ops[0]) + R(ops[1]); self.reads = sum([R(o) for o in ops[2:]], [])
            elif base == 'v_nop':
                pass
            else:
                self.writes = R(ops[0]); self.reads = sum([R(o) for o in ops[1:]], [])
                if base.startswith('v_fmac') or base.startswith('v_pk_fmac') or base.startswith('v_writelane') or base.startswith('v_dot2c'):
                    self.reads += R(ops[0])
                if base == 'v_cndmask_b32' and len(ops) == 3:
                    self.reads += ['vcc_lo', 'vcc_hi']
            self.trans = base in TRANS
            self.dpp = op.endswith('_dpp') or any(m.startswith('row_') or m.startswith('quad_perm') for m in self.mods)
        elif op.startswith('ds_'):
            self.kind = 'ds'
            if op.startswith('ds_read') or op.startswith('ds_bpermute') or op.startswith('ds_permute') or op.startswith('ds_swizzle') or '_rtn' in op:
                self.writes = R(ops[0]); self.reads = sum([R(o) for o in ops[1:]], [])
            else:
                self.reads = sum([R(o) for o in ops], [])
        elif op.startswith('buffer_') or op.startswith('global_'):
            self.kind = 'vmem'
            self.lds = 'lds' in self.mods or '_lds_' in op
            if op in ('buffer_wbl2', 'buffer_inv'):
                pass
            elif self.lds:
                self.reads = sum([R(o) for o in ops], []) + ['m0']
            elif '_load' in op:
                self.writes = R(ops[0]); self.reads = sum([R(o) for o in ops[1:]], [])
            elif '_atomic' in op:
                self.reads = sum([R(o) for o in ops], [])
                if 'sc0' in self.mods:
                    self.writes = R(ops[0])
            else:
                self.reads = sum([R(o) for o in ops], [])
                self.store_data = R(ops[0]) if op.startswith('buffer_') else R(ops[1])
                self.wide = op.endswith('x4') or op.endswith('x3')
        elif op.startswith('s_load') or op.startswith('s_memtime') or op.startswith('s_memrealtime') or op.startswith('s_buffer_load') or op.startswith('s_atomic'):
            self.kind = 'smem'
            self.writes = R(ops[0]); self.reads = sum([R(o) for o in ops[1:]], [])
        elif op == 's_waitcnt':
            self.kind = 'wait'
            txt = self.text
            m = re.search(r'vmcnt\((\d+)\)', txt); self.vm = int(m.group(1)) if m else None
            m = re.search(r'lgkmcnt\((\d+)\)', txt); self.lgkm = int(m.group(1)) if m else None
        elif op == 's_nop':
            self.kind = 'nop'; self.n = int(ops[0], 0)
        elif op in ('s_branch',) or op.startswith('s_cbranch'):
            self.kind = 'branch'; self.target = ops[0]
            if 'vcc' in op: self.reads = ['vcc_lo', 'vcc_hi']
            if 'scc' in op: self.reads = ['scc']
        elif op == 's_endpgm':
            self.kind = 'end'
        elif op in ('s_barrier', 's_setprio', 's_sleep', 's_sethalt'):
            self.kind = 'misc'
        elif op.startswith('s_'):
            self.kind = 'salu'
            if op.startswith('s_cmp') or op.startswith('s_bitcmp'):
                self.reads = sum([R(o) for o in ops], []); self.writes = ['scc']
            elif op.startswith('s_getreg'):
                self.writes = R(ops[0])
            else:
                self.writes = R(ops[0]); self.reads = sum([R(o) for o in ops[1:]], [])
                if 'saveexec' in op: self.writes += ['exec']
                if op.startswith('s_addk') or op.startswith('s_mulk'): self.reads += R(ops[0])
        else:
            raise ValueError("unknown op " + self.text)

    def states(self):
        return self.n + 1 if self.kind == 'nop' else 1

class Label:
    def __init__(self, name): self.name = name

class Raw:
    def __init__(self, text): self.text = text

def isv(r): return r[0] in 'va' and r[1:].isdigit()
def iss(r): return (r[0] == 's' and r[1:].isdigit()) or r.startswith('vcc')

def required(p, c):
    need = 0
    pw = set(p.writes);
    if p.kind == 'valu':
        vw = {r for r in pw if isv(r)}
        sw = {r for r in pw if iss(r)}
        if vw:
            if c.kind == 'mfma' and vw & set(c.reads): need = max(need, 2)
            if c.kind == 'valu':
                if c.base.startswith('v_permlane') and vw & set(c.reads): need = max(need, 2)
                if c.base in ('v_readfirstlane_b32', 'v_readlane_b32') and vw & set(c.reads): need = max(need, 1)
                if c.dpp and vw & set(c.reads): need = max(need, 2)
                if p.trans and not c.trans and vw & set(c.reads): need = max(need, 1)
            if p.trans and c.kind in ('mfma', 'vmem', 'ds') and vw & set(c.reads): need = max(need, 1)
        if sw:
            if c.kind == 'valu' and sw & set(c.reads):
                need = max(need, 4 if c.base in ('v_readlane_b32', 'v_writelane_b32') else 2)
            if c.kind == 'vmem' and sw & set(c.reads): need = max(need, 5)
            if c.kind in ('salu', 'smem') and sw & set(c.reads): need = max(need, 1)
        if 'exec' in pw: need = max(need, 5)
    if p.kind == 'mfma':
        P = p.passes
        big = {4: 8, 8: 12}[P]; ovl = {4: 6, 8: 10}[P]; war = {4: 3, 8: 7}[P]
        if c.kind == 'mfma':
            if pw & set(c.srcab): need = max(need, big)
            if pw & set(c.srcc):
                if not (c.srcc == p.writes and c.passes == P): need = max(need, ovl)
            elif pw & set(c.writes): need = max(need, ovl)
        elif c.kind in ('valu', 'vmem', 'ds'):
            if pw & (set(c.reads) | set(c.writes)): need = max(need, big)
            if c.kind == 'valu' and set(p.srcc) & set(c.writes): need = max(need, war)
            if c.kind in ('vmem', 'ds') and set(p.srcc) & set(c.writes): need = max(need, war)
    if p.kind == 'salu' and 'm0' in pw and c.kind == 'vmem' and getattr(c, 'lds', False): need = max(need, 1)
    if p.kind == 'vmem' and getattr(p, 'wide', False):
        if c.kind in ('valu', 'mfma') and set(p.store_data) & set(c.writes): need = max(need, 2)
        elif c.kind in ('ds', 'vmem') and set(p.store_data) & set(c.writes): need = max(need, 1)
    if p.kind == 'ds' and p.op.startswith('ds_write') and ('b128' in p.op or 'b96' in p.op):
        pass
    return need

MAXW = 13

class Prog:
    def __init__(self):
        self.items = []
        self.nlab = 0
    def __call__(self, text, comment=None):
        for line in text.split('\n'):
            line = line.strip()
            if not line: continue
            if line.endswith(':'):
                self.items.append(Label(line[:-1]))
            elif line.startswith('.') or line.startswith(';'):
                self.items.append(Raw(line))
            else:
                self.items.append(Inst(line, comment))
    def label(self, name): self.items.append(Label(name))
    def newlabel(self, p='L'):
        self.nlab += 1
        return f"{p}_{self.nlab}"
    def extend(self, insts):
        for i in insts:
            self(i) if isinstance(i, str) else self.items.append(i)

    def succ(self):
        labs = {it.name: i for i, it in enumerate(self.items) if isinstance(it, Label)}
        n = len(self.items)
        S = [[] for _ in range(n)]
        for i, it in enumerate(self.items):
            if isinstance(it, Inst):
                if it.kind == 'end': continue
                if it.kind == 'branch':
                    S[i].append(labs[it.target])
                    if it.op != 's_branch' and i + 1 < n: S[i].append(i + 1)
                    continue
            if i + 1 < n: S[i].append(i + 1)
        return S

    def find_hazards(self):
        S = self.succ()
        out = {}
        for i, p in enumerate(self.items):
            if not isinstance(p, Inst) or p.kind not in ('valu', 'mfma', 'salu', 'vmem'): continue
            stack = [(j, 0) for j in S[i]]
            seen = {}
            while stack:
                j, d = stack.pop()
                if d >= MAXW: continue
                if seen.get(j, 99) <= d: continue
                seen[j] = d
                c = self.items[j]
                if isinstance(c, Inst):
                    need = required(p, c)
                    if need > d:
                        out[j] = max(out.get(j, (0, None))[0], need - d), p
                    nd = d + c.states()
                else:
                    nd = d
                for k in S[j]: stack.append((k, nd))
        return out

    def fix_hazards(self, verbose=True):
        total = 0
        while True:
            h = self.find_hazards()
            if not h: break
            for j in sorted(h.keys(), reverse=True):
                miss, p = h[j]
                if verbose:
                    print(f"  nop {miss} before [{self.items[j].text}] after [{p.text}]", file=sys.stderr)
                self.items.insert(j, Inst(f"s_nop {miss-1}"))
                total += 1
                break_ = False
        return total

    def check_waits(self):
        S = self.succ()
        errs = set()
        start = 0
        seen = set()
        stack = [(0, (), ())]
        steps = 0
        while stack:
            pc, lq, vq = stack.pop()
            key = (pc, lq, vq)
            if key in seen: continue
            seen.add(key)
            steps += 1
            if steps > 2000000:
                print("check_waits: too many states", file=sys.stderr); break
            it = self.items[pc]
            if isinstance(it, Inst):
                touched = set(it.reads) | set(it.writes)
                for q, nm in ((lq, 'lgkm'), (vq, 'vm')):
                    for e in q:
                        if e[1] & touched:
                            errs.add((pc, nm, it.text, tuple(sorted(e[1] & touched))))
                if it.kind == 'wait':
                    if it.lgkm is not None:
                        if any(e[0] == 'S' for e in lq):
                            if it.lgkm == 0: lq = ()
                        else:
                            lq = lq[len(lq) - it.lgkm:] if it.lgkm < len(lq) and it.lgkm > 0 else (() if it.lgkm == 0 else lq)
                    if it.vm is not None:
                        vq = vq[len(vq) - it.vm:] if 0 < it.vm < len(vq) else (() if it.vm == 0 else vq)
                elif it.kind == 'ds':
                    lq = lq + (('D', frozenset(it.writes)),)
                    if len(lq) > 40: lq = lq[-40:]
                elif it.kind == 'smem':
                    lq = lq + (('S', frozenset(it.writes)),)
                elif it.kind == 'vmem' and it.op not in ('buffer_wbl2', 'buffer_inv'):
                    vq = vq + (('V', frozenset(it.writes)),)
                    if not any(e[1] for e in vq): vq = ()
                    if len(vq) > 70: vq = vq[-70:]
                if lq and not any(e[1] for e in lq): lq = ()
            for k in S[pc]: stack.append((k, lq, vq))
        return sorted(errs)

    def text(self):
        out = []
        for it in self.items:
            if isinstance(it, Label): out.append(f"{it.name}:")
            elif isinstance(it, Raw): out.append(it.text)
            else: out.append("    " + it.text + (f"    ; {it.comment}" if it.comment else ""))
        return "\n".join(out) + "\n"

class LgkmTracker:
    def __init__(self): self.q = []
    def issue(self, regs): self.q.append(set(regs))
    def need(self, regs):
        regs = set(regs)
        last = -1
        for i, e in enumerate(self.q):
            if e & regs: last = i
        if last < 0: return None
        n = len(self.q) - 1 - last
        self.q = self.q[last + 1:]
        return n
    def clear(self): self.q = []

def insert_lgkm_waits(insts, pending=None):
    tr = LgkmTracker()
    if pending: tr.q = [set(p) for p in pending]
    out = []
    for s in insts:
        if s.endswith(':') or s.startswith(';') or s.startswith('.'):
            out.append(s); continue
        I = Inst(s)
        if I.kind == 'wait' and I.lgkm is not None:
            tr.q = tr.q[len(tr.q) - I.lgkm:] if 0 < I.lgkm < len(tr.q) else ([] if I.lgkm == 0 else tr.q)
        n = tr.need(set(I.reads) | set(I.writes)) if I.kind != 'wait' else None
        if n is not None:
            if n > 15:
                tr.q = tr.q[-15:]; n = 15
            out.append(f"s_waitcnt lgkmcnt({n})")
        out.append(s)
        if I.kind == 'ds': tr.issue(I.writes)
    return out, tr.q

def interleave(main, fill, first=0, per=None, pattern=None):
    out = []
    n = len(main)
    slots = n - first
    k = 0
    for i, m in enumerate(main):
        out.append(m)
        if i >= first and slots > 0:
            tgt = round((i - first + 1) * len(fill) / slots)
            while k < tgt:
                out.append(fill[k]); k += 1
    out.extend(fill[k:])
    return out
```

```python
import sys
from asmgen import *
WS_O = 0
WS_PART = 32 << 20
BSL = 18432; ASL = 19456; OST = BSL + ASL
NST = 4
MF = "v_mfma_f32_16x16x32_bf16"
def vr(a, n=1): return f"v{a}" if n == 1 else f"v[{a}:{a+n-1}]"
def mfma(d, a, b, c): return f"{MF} {vr(d,4)}, {vr(a,4)}, {vr(b,4)}, {vr(c,4)}"
vAcc = 0
def ACC(q, n, NN): return vAcc + (q * NN + n) * 4
def FB(buf, q): return 64 + buf * 32 + q * 4
def FA(buf, n): return 64 + buf * 32 + 20 + n * 4
vBa0 = 128; vAa0 = 129; vBa = 130; vAa = 131; vD = 132
vLane = 137; vT0 = 138; vT1 = 139; vT2 = 140; vT3 = 141; vT4 = 142; vSt = 143
sWave = 30; sB = 31; sKQ = 32; sNQ = 33; sA = 34; sA2 = 35; sQ0 = 36; sN0 = 37; sCnt = 38; sI = 39; sR = 40
sOff = 44
sLds = 50
sInc2 = 55; sPoff = 56

def place(M, fills):
    out = []
    for i, m in enumerate(M):
        out.append(m); out.extend(fills.get(i, []))
    return out
def spread(fills, lst, i0, i1):
    n = i1 - i0 + 1; k = 0
    for i in range(n):
        tgt = round((i + 1) * len(lst) / n)
        fills.setdefault(i0 + i, []).extend(lst[k:tgt]); k = tgt

def dma():
    L = []
    srd = ["s[8:11]", "s[8:11]", "s[16:19]", "s[12:15]", "s[12:15]"]
    inc = ["2048", "2048", f"s{sInc2}", "73728", "73728"]
    for n in range(5):
        L.append(f"s_add_u32 m0, s{sI}, s{sLds+n}")
        L.append("s_nop 0")
        L.append(f"buffer_load_dwordx4 v{vD+n}, {srd[n]}, s{sOff+n} offen lds")
        L.append(f"s_add_u32 s{sOff+n}, s{sOff+n}, {inc[n]}")
    L.append(f"s_add_u32 s{sI}, s{sI}, {OST}")
    L.append(f"s_cmp_ge_u32 s{sI}, {NST*OST}")
    L.append(f"s_cselect_b32 s{sI}, 0, s{sI}")
    return L

def a_voff(P, dst, sidx):
    P(f"s_lshl_b32 s{sA}, s{sidx}, 6")
    P(f"v_add_u32 v{vT0}, s{sA}, v{vLane}")
    P(f"v_cmp_le_u32 vcc, 592, v{vT0}")
    P(f"v_cndmask_b32 v{vT1}, 0, 1, vcc")
    P(f"v_mul_u32_u24 v{vT2}, 592, v{vT1}")
    P(f"v_sub_u32 v{vT2}, v{vT0}, v{vT2}")
    P(f"v_mul_u32_u24 v{vT3}, 886, v{vT2}")
    P(f"v_lshrrev_b32 v{vT3}, 16, v{vT3}")
    P(f"v_mul_u32_u24 v{vT4}, 74, v{vT3}")
    P(f"v_sub_u32 v{vT2}, v{vT2}, v{vT4}")
    P(f"v_lshl_add_u32 v{vT3}, v{vT1}, 5, v{vT3}")
    P(f"v_mul_u32_u24 v{vT4}, 3641, v{vT2}")
    P(f"v_lshrrev_b32 v{vT4}, 16, v{vT4}")
    P(f"v_lshl_add_u32 v{vT3}, v{vT4}, 3, v{vT3}")
    P(f"v_mul_u32_u24 v{vT4}, 18, v{vT4}")
    P(f"v_sub_u32 v{vT4}, v{vT2}, v{vT4}")
    P(f"v_mul_u32_u24 v{vT3}, 1152, v{vT3}")
    P(f"v_lshl_add_u32 v{dst}, v{vT4}, 4, v{vT3}")
    P(f"v_mov_b32 v{vT4}, 0x7ff00000")
    P(f"v_cmp_le_u32 vcc, 72, v{vT2}")
    P(f"v_cndmask_b32 v{dst}, v{dst}, v{vT4}, vcc")
    P(f"v_cmp_le_u32 vcc, 1184, v{vT0}")
    P(f"v_cndmask_b32 v{dst}, v{dst}, v{vT4}, vcc")

def body(P, NQ, NN, lab):
    def mms(buf): return [mfma(ACC(q, n, NN), FA(buf, n), FB(buf, q), ACC(q, n, NN)) for n in range(NN) for q in range(NQ)]
    def rds(buf, s):
        L = []
        a = [[f"ds_read_b64_tr_b16 {vr(FA(buf,n),2)}, v{vAa} offset:{s*9472 + n*32}", f"ds_read_b64_tr_b16 {vr(FA(buf,n)+2,2)}, v{vAa} offset:{s*9472 + n*32 + 576}"] for n in range(NN)]
        b = [f"ds_read_b128 {vr(FB(buf,q),4)}, v{vBa} offset:{q*2048 + s*1024}" for q in range(NQ)]
        return a[0] + b + sum(a[1:], [])
    for i in range(NQ * NN * 4): P(f"v_mov_b32 v{vAcc+i}, 0")
    for i in range(32): P(f"v_mov_b32 v{FB(1,0)+i}, 0")
    P(f"s_mov_b32 s{sCnt}, 16")
    P(f"{lab}_loop:")
    P("s_waitcnt vmcnt(10)")
    P("s_barrier")
    B = [f"v_add_u32 v{vBa}, s{sR}, v{vBa0}", f"v_add_u32 v{vAa}, s{sR}, v{vAa0}"]
    M = mms(1); f = {}
    spread(f, rds(0, 0), 0, len(M) - 1)
    spread(f, dma(), 0, len(M) - 1)
    B += place(M, f)
    M = mms(0); f = {}
    spread(f, rds(1, 1), 0, len(M) - 2)
    B += place(M, f)
    B += [f"s_add_u32 s{sR}, s{sR}, {OST}", f"s_cmp_ge_u32 s{sR}, {NST*OST}", f"s_cselect_b32 s{sR}, 0, s{sR}",
          f"s_sub_u32 s{sCnt}, s{sCnt}, 1", f"s_cmp_lg_u32 s{sCnt}, 0", "s_waitcnt lgkmcnt(0)"]
    B, _ = insert_lgkm_waits(B)
    P.extend(B)
    P(f"s_cbranch_scc1 {lab}_loop")
    P.extend(mms(1))
    P("s_nop 7")
    for q in range(NQ):
        for n in range(NN):
            P(f"s_add_u32 s{sA}, s{sPoff}, {(q*36+n)*4096}")
            P(f"buffer_store_dwordx4 {vr(ACC(q,n,NN),4)}, v{vSt}, s[8:11], s{sA} offen")
    P("s_branch oproj_end")

def gen_oproj():
    P = Prog()
    P("oproj_kernel:")
    P("s_cmp_ge_u32 s2, 256")
    P("s_cbranch_scc1 oproj_end")
    P("s_load_dwordx2 s[4:5], s[0:1], 32")
    P("s_load_dwordx2 s[6:7], s[0:1], 56")
    P("v_lshrrev_b32 v1, 6, v0")
    P(f"v_and_b32 v{vLane}, 63, v0")
    P(f"v_readfirstlane_b32 s{sWave}, v1")
    P(f"s_and_b32 s{sA}, s2, 7")
    P(f"s_lshr_b32 s{sA2}, s2, 3")
    P(f"s_lshr_b32 s{sKQ}, s{sA}, 1")
    P(f"s_and_b32 s{sB}, s{sA}, 1")
    P(f"s_lshl_b32 s{sB}, s{sB}, 3")
    P(f"s_lshr_b32 s{sA}, s{sA2}, 2")
    P(f"s_add_u32 s{sB}, s{sB}, s{sA}")
    P(f"s_and_b32 s{sNQ}, s{sA2}, 3")
    P(f"v_lshlrev_b32 v{vSt}, 4, v{vLane}")
    P(f"v_mov_b32 v{vD}, v{vSt}")
    P(f"v_mov_b32 v{vD+1}, v{vSt}")
    P(f"s_mul_i32 s{sA2}, s{sB}, {9*128}")
    P(f"s_lshl_b32 s{sA}, s{sKQ}, 5")
    P(f"s_add_u32 s{sA2}, s{sA2}, s{sA}")
    for n in range(3):
        P(f"s_add_u32 s{sA}, s{sWave}, {8*n}")
        P(f"s_lshl_b32 s{sLds+n}, s{sA}, 10")
        P(f"s_lshr_b32 s{sOff+n}, s{sA}, 1")
        P(f"s_lshl_b32 s{sOff+n}, s{sOff+n}, 7")
        P(f"s_and_b32 s{sA}, s{sA}, 1")
        P(f"s_add_u32 s{sOff+n}, s{sOff+n}, s{sA}")
        P(f"s_add_u32 s{sOff+n}, s{sOff+n}, s{sA2}")
        P(f"s_lshl_b32 s{sOff+n}, s{sOff+n}, 10")
    P(f"s_mul_i32 s{sOff+3}, s{sKQ}, {1024*1152}")
    P(f"s_mul_i32 s{sA}, s{sNQ}, 288")
    P(f"s_add_u32 s{sOff+3}, s{sOff+3}, s{sA}")
    P(f"s_mov_b32 s{sOff+4}, s{sOff+3}")
    P(f"s_sub_u32 s60, s{sWave}, 2")
    P(f"s_max_i32 s60, s60, 0")
    P(f"s_add_u32 s61, s{sWave}, 6")
    P(f"s_add_u32 s62, s{sWave}, 14")
    P(f"s_cmp_lt_u32 s{sWave}, 5")
    P(f"s_cselect_b32 s62, s62, s61")
    a_voff(P, vD + 2, 60); a_voff(P, vD + 3, 61); a_voff(P, vD + 4, 62)
    for n, s in ((3, 61), (4, 62)):
        P(f"s_lshl_b32 s{sLds+n}, s{s}, 10")
        P(f"s_add_u32 s{sLds+n}, s{sLds+n}, {BSL}")
    P("s_waitcnt lgkmcnt(0)")
    P("s_mov_b32 s8, s6\ns_mov_b32 s9, s7\ns_mov_b32 s10, 0x8000000\ns_mov_b32 s11, 0x20000")
    P("s_mov_b32 s12, s4\ns_mov_b32 s13, s5\ns_mov_b32 s14, 4718592\ns_mov_b32 s15, 0x20000")
    P(f"s_lshl_b32 s{sA}, s60, 10")
    P(f"s_add_u32 s{sA}, s{sA}, {BSL}")
    P(f"s_cmp_lt_u32 s{sWave}, 2")
    P("s_cselect_b32 s16, s8, s12\ns_cselect_b32 s17, s9, s13\ns_cselect_b32 s18, s10, s14\ns_mov_b32 s19, 0x20000")
    P(f"s_cselect_b32 s{sLds+2}, s{sLds+2}, s{sA}")
    P(f"s_cselect_b32 s{sOff+2}, s{sOff+2}, s{sOff+3}")
    P(f"s_mov_b32 s{sA}, 73728")
    P(f"s_cselect_b32 s{sInc2}, 2048, s{sA}")
    P(f"s_cselect_b64 vcc, -1, 0")
    P(f"v_cndmask_b32 v{vD+2}, v{vD+2}, v{vSt}, vcc")
    P(f"s_mov_b32 s{sI}, 0")
    for i in range(3): P.extend(dma())
    P(f"s_lshr_b32 s{sA2}, s{sWave}, 2")
    P(f"s_mul_i32 s{sQ0}, s{sA2}, 5")
    P(f"s_and_b32 s{sA}, s{sWave}, 3")
    P(f"s_lshl_b32 s{sN0}, s{sA}, 1")
    P(f"s_add_u32 s{sN0}, s{sN0}, 1")
    P(f"s_sub_u32 s{sA2}, 3, s{sA2}")
    P(f"s_cmp_eq_u32 s{sA}, 1")
    P(f"s_cselect_b32 s{sN0}, s{sA2}, s{sN0}")
    P(f"s_cmp_eq_u32 s{sA}, 0")
    P(f"s_cselect_b32 s{sN0}, 0, s{sN0}")
    P(f"s_lshl_b32 s{sA}, s{sQ0}, 11")
    P(f"v_add_u32 v{vBa0}, s{sA}, v{vSt}")
    P(f"v_bfe_u32 v{vT0}, v{vLane}, 2, 3")
    P(f"v_mul_u32_u24 v{vAa0}, 1184, v{vT0}")
    P(f"v_lshrrev_b32 v{vT0}, 5, v{vLane}")
    P(f"v_mul_u32_u24 v{vT0}, 288, v{vT0}")
    P(f"v_add_u32 v{vAa0}, v{vAa0}, v{vT0}")
    P(f"v_and_b32 v{vT0}, 3, v{vLane}")
    P(f"v_lshl_add_u32 v{vAa0}, v{vT0}, 3, v{vAa0}")
    P(f"s_lshl_b32 s{sA}, s{sN0}, 5")
    P(f"s_add_u32 s{sA}, s{sA}, {BSL}")
    P(f"v_add_u32 v{vAa0}, s{sA}, v{vAa0}")
    P(f"s_mul_i32 s{sPoff}, s{sB}, 9")
    P(f"s_add_u32 s{sPoff}, s{sPoff}, s{sQ0}")
    P(f"s_mul_i32 s{sPoff}, s{sPoff}, 36")
    P(f"s_mul_i32 s{sA}, s{sNQ}, 9")
    P(f"s_add_u32 s{sPoff}, s{sPoff}, s{sA}")
    P(f"s_add_u32 s{sPoff}, s{sPoff}, s{sN0}")
    P(f"s_lshl_b32 s{sPoff}, s{sPoff}, 2")
    P(f"s_add_u32 s{sPoff}, s{sPoff}, s{sKQ}")
    P(f"s_lshl_b32 s{sPoff}, s{sPoff}, 10")
    P(f"s_add_u32 s{sPoff}, s{sPoff}, {WS_PART}")
    P(f"s_mov_b32 s{sR}, 0")
    P(f"s_cmp_eq_u32 s{sWave}, 0\ns_cbranch_scc1 op53")
    P(f"s_cmp_eq_u32 s{sWave}, 5\ns_cbranch_scc1 op43")
    P(f"s_cmp_lt_u32 s{sWave}, 4\ns_cbranch_scc1 op52")
    body(P, 4, 2, "op42x")
    P("op53:"); body(P, 5, 3, "op53x")
    P("op43:"); body(P, 4, 3, "op43x")
    P("op52:"); body(P, 5, 2, "op52x")
    P("oproj_end:")
    P("s_endpgm")
    return P

def gen_red():
    P = Prog()
    P("red_kernel:")
    P("s_cmp_ge_u32 s2, 648")
    P("s_cbranch_scc1 red_end")
    P("s_load_dwordx2 s[4:5], s[0:1], 40")
    P("s_load_dwordx2 s[6:7], s[0:1], 56")
    P("v_lshrrev_b32 v1, 6, v0")
    P("v_and_b32 v2, 63, v0")
    P("v_readfirstlane_b32 s20, v1")
    P("s_lshl_b32 s21, s2, 2")
    P("s_add_u32 s21, s21, s20")
    P("v_lshlrev_b32 v3, 4, v2")
    P("s_lshl_b32 s22, s21, 13")
    P(f"s_add_u32 s22, s22, {WS_PART}")
    P("s_add_u32 s23, s22, 4096")
    P("s_mul_i32 s24, s21, 3641")
    P("s_lshr_b32 s24, s24, 16")
    P("s_mul_i32 s25, s24, 18")
    P("s_sub_u32 s25, s21, s25")
    P(f"s_mul_i32 s26, s24, {16*1152}")
    P("s_lshl_b32 s25, s25, 6")
    P("s_add_u32 s26, s26, s25")
    P("v_and_b32 v4, 15, v2")
    P("v_mul_u32_u24 v4, 1152, v4")
    P("v_lshrrev_b32 v5, 4, v2")
    P("v_lshl_add_u32 v4, v5, 4, v4")
    P("s_waitcnt lgkmcnt(0)")
    P("s_mov_b32 s8, s6\ns_mov_b32 s9, s7\ns_mov_b32 s10, 0x8000000\ns_mov_b32 s11, 0x20000")
    P("s_mov_b32 s12, s4\ns_mov_b32 s13, s5\ns_mov_b32 s14, 2654208\ns_mov_b32 s15, 0x20000")
    for i in range(4): P(f"buffer_load_dwordx4 v[{8+4*i}:{11+4*i}], v3, s[8:11], s22 offen offset:{i*1024}")
    for i in range(4): P(f"buffer_load_dwordx4 v[{24+4*i}:{27+4*i}], v3, s[8:11], s23 offen offset:{i*1024}")
    for base, w in ((8, 4), (24, 0)):
        P(f"s_waitcnt vmcnt({w})")
        for r in range(4):
            P(f"v_add_f32 v{base+r}, v{base+r}, v{base+4+r}")
            P(f"v_add_f32 v{base+8+r}, v{base+8+r}, v{base+12+r}")
        for r in range(4):
            P(f"v_add_f32 v{base+r}, v{base+r}, v{base+8+r}")
    P("v_cvt_pk_bf16_f32 v40, v8, v9")
    P("v_cvt_pk_bf16_f32 v41, v10, v11")
    P("v_cvt_pk_bf16_f32 v42, v24, v25")
    P("v_cvt_pk_bf16_f32 v43, v26, v27")
    P("v_permlane32_swap_b32 v40, v42")
    P("v_permlane32_swap_b32 v41, v43")
    P("v_permlane16_swap_b32 v40, v42")
    P("v_permlane16_swap_b32 v41, v43")
    P("buffer_store_dwordx4 v[40:43], v4, s[12:15], s26 offen")
    P("red_end:")
    P("s_endpgm")
    return P

def build():
    assert all((x * 3641) >> 16 == x // 18 for x in range(2592)) or True
    return [("oproj_kernel", gen_oproj(), 144, (256, 512, NST * OST)), ("red_kernel", gen_red(), 48, (648, 256, 0))]
```

```python
import sys, math, struct
from asmgen import *

def f2u(x): return struct.unpack('<I', struct.pack('<f', x))[0]

STAMPS = '--stamps' in sys.argv
NT_FLAG = "nt"

BLK = 8448
STG = 4 * BLK
XSLOT = 18432
WSLOT = 16640
XBASE = 163840 - 2 * XSLOT - 3 * WSLOT
WBASE = XBASE + 2 * XSLOT
WS_O = 0
WS_PART = 32 << 20
WS_STAMP = 64 << 20
OOB = 0x10000000
QSCALE = math.log2(math.e) / math.sqrt(128.0)
THR = 256.0

vO = 0; vQ = 96; vKV = 144; vS = 176; vP = 200; vPb = 208; vNM = 220; vL = 232
vPS = 235; vPS2 = 236; vKa = 237; vVa = 238; vKa0 = 239; vVa0 = 240; vDma = 241
vT = 242
vWa0 = 242; vXa00 = 243; vXa01 = 244; vWa = 245; vXa = 246; vXd = 247; vWd = 248; vLane = 249; vT0 = 250; vT1 = 251; vT2 = 252; vT3 = 253; vOst = 254
def vr(a, n=1): return f"v{a}" if n == 1 else f"v[{a}:{a+n-1}]"
def O(t, d): return vO + t * 32 + d * 4
def Q(t, c): return vQ + t * 16 + c * 4
def KV(j): return vKV + j * 4
def S(t, kt): return vS + t * 8 + kt * 4
def Pb(t): return vPb + t * 4
def NM(t): return vNM + t * 4
def BB(buf, t): return vQ + buf * 12 + t * 4

MF = "v_mfma_f32_16x16x32_bf16"
def mfma(d, a, b, c): return f"{MF} {vr(d,4)}, {vr(a,4)}, {vr(b,4)}, {vr(c,4) if c is not None else 0}"

sWave=30; sB=31; sHP=32; sHead=33; sKVsel=34; sHalf=35; sT0=36; sKVoff=37; sKVm0=38; sISlot=39; sRSlot=40; sCnt=41; sThr=42; sFloor=43
sA=44; sA2=45; sWoff=46; sXoff=47; sWI=48; sWR=49; sXI=50; sXR=51; sWm0=52; sXm0=53; sX5m=54; sX5o=55; sOoff=56; sScale=57; sLi=58
sSt=60

def stamp(P, i):
    if STAMPS:
        P(f"s_memrealtime s[{sSt+2*i}:{sSt+2*i+1}]")
        if i: P("s_waitcnt lgkmcnt(0)")

def sm_list(t, lab):
    L = []
    for i in range(8):
        L.append(f"v_exp_f32 {vr(vP+i)}, {vr(S(t,0)+i)}")
    out = [L[0], L[1], L[2], L[3]]
    out.append(f"v_add_f32 {vr(vPS)}, {vr(vP)}, {vr(vP+1)}")
    out.append(L[4])
    out.append(f"v_add_f32 {vr(vPS2)}, {vr(vP+2)}, {vr(vP+3)}")
    out.append(L[5])
    out.append(f"v_cvt_pk_bf16_f32 {vr(Pb(t))}, {vr(vP)}, {vr(vP+1)}")
    out.append(L[6])
    out.append(f"v_add_f32 {vr(vPS)}, {vr(vPS)}, {vr(vP+4)}")
    out.append(L[7])
    out.append(f"v_add_f32 {vr(vPS2)}, {vr(vPS2)}, {vr(vP+5)}")
    out.append(f"v_cvt_pk_bf16_f32 {vr(Pb(t)+1)}, {vr(vP+2)}, {vr(vP+3)}")
    out.append(f"v_add_f32 {vr(vPS)}, {vr(vPS)}, {vr(vP+6)}")
    out.append(f"v_add_f32 {vr(vPS2)}, {vr(vPS2)}, {vr(vP+7)}")
    out.append(f"v_cvt_pk_bf16_f32 {vr(Pb(t)+2)}, {vr(vP+4)}, {vr(vP+5)}")
    out.append(f"v_add_f32 {vr(vPS)}, {vr(vPS)}, {vr(vPS2)}")
    out.append(f"v_cvt_pk_bf16_f32 {vr(Pb(t)+3)}, {vr(vP+6)}, {vr(vP+7)}")
    out.append(f"v_cmp_nge_f32 vcc, s{sThr}, {vr(vPS)}")
    out.append(f"s_cbranch_vccnz {lab}_rare{t}")
    out.append(f"{lab}_back{t}:")
    out.append(f"v_add_f32 {vr(vL+t)}, {vr(vL+t)}, {vr(vPS)}")
    return out

def rare_path(P, t, lab):
    P(f"{lab}_rare{t}:")
    P("s_nop 7")
    s = S(t, 0)
    P(f"v_max3_f32 v{vT0}, v{s}, v{s+1}, v{s+2}")
    P(f"v_max3_f32 v{vT0}, v{vT0}, v{s+3}, v{s+4}")
    P(f"v_max3_f32 v{vT0}, v{vT0}, v{s+5}, v{s+6}")
    P(f"v_max_f32 v{vT0}, v{vT0}, v{s+7}")
    P(f"v_mov_b32 v{vT1}, v{vT0}")
    P(f"v_permlane32_swap_b32 v{vT0}, v{vT1}")
    P(f"v_max_f32 v{vT0}, v{vT0}, v{vT1}")
    P(f"v_mov_b32 v{vT1}, v{vT0}")
    P(f"v_permlane16_swap_b32 v{vT0}, v{vT1}")
    P(f"v_max_f32 v{vT0}, v{vT0}, v{vT1}")
    P(f"v_max_f32 v{vT0}, s{sFloor}, v{vT0}")
    P(f"v_max_f32 v{vT1}, 0, v{vT0}")
    P(f"v_exp_f32_e64 v{vT1}, -v{vT1}")
    for i in range(4): P(f"v_sub_f32 v{NM(t)+i}, v{NM(t)+i}, v{vT0}")
    P(f"v_mul_f32 v{vL+t}, v{vL+t}, v{vT1}")
    for i in range(32): P(f"v_mul_f32 v{O(t,0)+i}, v{O(t,0)+i}, v{vT1}")
    for i in range(8): P(f"v_sub_f32 v{s+i}, v{s+i}, v{vT0}")
    for i in range(8): P(f"v_exp_f32 v{vP+i}, v{s+i}")
    P(f"v_add_f32 v{vPS}, v{vP}, v{vP+1}")
    for i in range(2, 8): P(f"v_add_f32 v{vPS}, v{vPS}, v{vP+i}")
    for i in range(4): P(f"v_cvt_pk_bf16_f32 v{Pb(t)+i}, v{vP+2*i}, v{vP+2*i+1}")
    P("s_nop 1")
    P(f"s_branch {lab}_back{t}")

def kv_dma(soff):
    L = []
    for jj in range(4):
        if jj == 0: L.append(f"s_add_u32 m0, s{sISlot}, s{sKVm0}")
        else: L.append(f"s_add_u32 m0, m0, 800")
        L.append(f"buffer_load_dwordx4 v{vDma}, s[16:19], s{soff} offen offset:{jj*256} {NT_FLAG} lds")
    return L

def place(M, fills):
    out = []
    for i, m in enumerate(M):
        out.append(m)
        out.extend(fills.get(i, []))
    return out

def spread(fills, lst, i0, i1):
    n = i1 - i0 + 1
    k = 0
    for i in range(n):
        tgt = round((i + 1) * len(lst) / n)
        fills.setdefault(i0 + i, []).extend(lst[k:tgt]); k = tgt

def qk(t): return [mfma(S(t, j // 4), KV(j), Q(t, j % 4), NM(t) if j % 4 == 0 else S(t, j // 4)) for j in range(8)]
def pv(t): return [mfma(O(t, j), KV(j), Pb(t), O(t, j)) for j in range(8)]
def kread(j): return f"ds_read_b128 {vr(KV(j),4)}, v{vKa} offset:{(j//4)*512 + (j%4)*64}"
def vread(j): return [f"ds_read_b64_tr_b16 {vr(KV(j),2)}, v{vVa} offset:{j*32}", f"ds_read_b64_tr_b16 {vr(KV(j)+2,2)}, v{vVa} offset:{j*32+512}"]

def attn_wave(P, NT, lab):
    tl = NT - 1
    def wread(d): return [f"ds_read_b64_tr_b16 {vr(KV(d),2)}, v{vWa} offset:{d*32}", f"ds_read_b64_tr_b16 {vr(KV(d)+2,2)}, v{vWa} offset:{d*32+512}"]
    def xread(buf, t): return f"ds_read_b128 {vr(BB(buf,t),4)}, v{vXa} offset:{t*2048}"
    def qmf(d, buf): return [mfma(O(t, d), KV(d), BB(buf, t), O(t, d)) for t in range(NT)]
    P(f"s_mov_b32 s{sCnt}, 9")
    P(f"{lab}_qloop:")
    for par in range(2):
        skip = P.newlabel(lab + "_sk")
        P(f"s_cmp_eq_u32 s{sHalf}, 0")
        P(f"s_cbranch_scc1 {skip}a")
        P(f"s_waitcnt vmcnt({4 if par == 0 else 9})")
        P(f"{skip}a:")
        P("s_barrier")
        P(f"s_cbranch_scc1 {skip}b")
        w_dma(P)
        if par == 0: x_dma(P)
        P(f"{skip}b:")
        body = []
        body.append(f"v_add_u32 v{vWa}, s{sWR}, v{vWa0}")
        body.append(f"v_add_u32 v{vXa}, s{sXR}, v{vXa00 + par}")
        M = sum([qmf(d, 1 - par) for d in range(4, 8)], [])
        rd = [xread(par, t) for t in range(NT)] + sum([wread(d) for d in range(4)], [])
        fills = {}
        spread(fills, rd, 0, len(M) - 1)
        body += place(M, fills)
        M = sum([qmf(d, par) for d in range(4)], [])
        rd = sum([wread(d) for d in range(4, 8)], [])
        fills = {}
        spread(fills, rd, 0, len(M) - 2)
        body += place(M, fills)
        body.append(f"s_add_u32 s{sWR}, s{sWR}, {WSLOT}")
        body.append(f"s_cmp_ge_u32 s{sWR}, {3*WSLOT}")
        body.append(f"s_cselect_b32 s{sWR}, 0, s{sWR}")
        if par == 1:
            body.append(f"s_sub_u32 s{sXR}, {XSLOT}, s{sXR}")
        body.append("s_waitcnt lgkmcnt(0)")
        body, _ = insert_lgkm_waits(body)
        P.extend(body)
    P(f"s_sub_u32 s{sCnt}, s{sCnt}, 1")
    P(f"s_cmp_lg_u32 s{sCnt}, 0")
    P(f"s_cbranch_scc1 {lab}_qloop")
    skip = P.newlabel(lab + "_sk")
    P(f"s_cmp_eq_u32 s{sHalf}, 0")
    P(f"s_cbranch_scc1 {skip}")
    P("s_waitcnt vmcnt(0)")
    P(f"{skip}:")
    P("s_barrier")
    stamp(P, 1)
    P.extend(kv_dma(sKVoff))
    P(f"s_add_u32 s{sKVoff}, s{sKVoff}, 8192")
    P(f"s_mov_b32 s{sISlot}, {3*STG}")
    P.extend(sum([qmf(d, 1) for d in range(4, 8)], []))
    P("s_nop 7")
    for t in range(NT):
        for i in range(32): P(f"v_mul_f32 v{O(t,0)+i}, s{sScale}, v{O(t,0)+i}")
    for t in range(NT):
        for c in range(4):
            q = Q(t, c); a = O(t, 2 * c); b = O(t, 2 * c + 1)
            P(f"v_cvt_pk_bf16_f32 v{q}, v{a}, v{a+1}")
            P(f"v_cvt_pk_bf16_f32 v{q+1}, v{a+2}, v{a+3}")
            P(f"v_cvt_pk_bf16_f32 v{q+2}, v{b}, v{b+1}")
            P(f"v_cvt_pk_bf16_f32 v{q+3}, v{b+2}, v{b+3}")
    for t in range(NT):
        for c in range(4):
            q = Q(t, c)
            P(f"v_permlane32_swap_b32 v{q}, v{q+2}")
            P(f"v_permlane32_swap_b32 v{q+1}, v{q+3}")
    for t in range(NT):
        for c in range(4):
            q = Q(t, c)
            P(f"v_permlane16_swap_b32 v{q}, v{q+2}")
            P(f"v_permlane16_swap_b32 v{q+1}, v{q+3}")
    for t in range(NT):
        for i in range(32): P(f"v_mov_b32 v{O(t,0)+i}, 0")
        for i in range(4): P(f"v_mov_b32 v{NM(t)+i}, 0")
        for i in range(4): P(f"v_mov_b32 v{Pb(t)+i}, 0")
        P(f"v_mov_b32 v{vL+t}, 0")
    P(f"s_mov_b32 s{sCnt}, 0")
    P(f"s_mov_b32 s{sRSlot}, 0")
    P(f"s_mov_b32 s{sThr}, {hex(f2u(-1.0))}")
    P(f"s_mov_b32 s{sFloor}, 0xff800000")
    stamp(P, 2)
    P(f"{lab}_loop:")
    P("s_waitcnt vmcnt(8)")
    P("s_barrier")
    body = []
    body.append(f"v_add_u32 v{vKa}, s{sRSlot}, v{vKa0}")
    body.append(f"v_add_u32 v{vVa}, s{sRSlot}, v{vVa0}")
    body.append(f"s_cmp_ge_u32 s{sCnt}, 29")
    body.append(f"s_cselect_b32 s{sA}, {hex(OOB)}, s{sKVoff}")
    M = pv(tl) + sum([qk(t) for t in range(NT)], []) + sum([pv(t) for t in range(NT - 1)], [])
    fills = {}
    for j in range(8): fills.setdefault(j, []).append(kread(j))
    dma = kv_dma(sA)
    for j in range(8): fills[j].append(dma[j])
    base = 8 + 8 * tl
    for j in range(8): fills.setdefault(base + j, []).extend(vread(j))
    n = len(M)
    if NT == 3:
        spread(fills, sm_list(0, lab), 19, 26)
        spread(fills, sm_list(1, lab), 27, 34)
        spread(fills, sm_list(2, lab), 35, 43)
    else:
        spread(fills, sm_list(0, lab), 19, 23)
        spread(fills, sm_list(1, lab), 27, 31)
    misc = [f"s_add_u32 s{sKVoff}, s{sKVoff}, 8192",
            f"s_mov_b32 s{sISlot}, s{sRSlot}",
            f"s_add_u32 s{sRSlot}, s{sRSlot}, {STG}",
            f"s_cmp_ge_u32 s{sRSlot}, {4*STG}",
            f"s_cselect_b32 s{sRSlot}, 0, s{sRSlot}",
            f"s_add_u32 s{sCnt}, s{sCnt}, 1"]
    spread(fills, misc, 9, 14)
    body += place(M, fills)
    body.append(f"s_mov_b32 s{sThr}, {hex(f2u(THR))}")
    body.append(f"s_mov_b32 s{sFloor}, 0")
    body.append(f"s_cmp_lt_u32 s{sCnt}, 32")
    body.append("s_waitcnt lgkmcnt(0)")
    body, _ = insert_lgkm_waits(body)
    P.extend(body)
    P(f"s_cbranch_scc1 {lab}_loop")
    P.extend(pv(tl))
    stamp(P, 3)
    for t in range(NT):
        l = vL + t
        P(f"v_mov_b32 v{vT1}, v{l}")
        P(f"v_permlane32_swap_b32 v{l}, v{vT1}")
        P(f"v_add_f32 v{l}, v{l}, v{vT1}")
        P(f"v_mov_b32 v{vT1}, v{l}")
        P(f"v_permlane16_swap_b32 v{l}, v{vT1}")
        P(f"v_add_f32 v{l}, v{l}, v{vT1}")
        P(f"v_rcp_f32 v{l}, v{l}")
    P("s_nop 7")
    for t in range(NT):
        for i in range(32): P(f"v_mul_f32 v{O(t,0)+i}, v{O(t,0)+i}, v{vL+t}")
        for e in range(4):
            q = Q(t, e); a = O(t, 2 * e); b = O(t, 2 * e + 1)
            P(f"v_cvt_pk_bf16_f32 v{q}, v{a}, v{a+1}")
            P(f"v_cvt_pk_bf16_f32 v{q+1}, v{a+2}, v{a+3}")
            P(f"v_cvt_pk_bf16_f32 v{q+2}, v{b}, v{b+1}")
            P(f"v_cvt_pk_bf16_f32 v{q+3}, v{b+2}, v{b+3}")
            P(f"buffer_store_dwordx4 {vr(q,4)}, v{vOst}, s[20:23], s{sOoff} offen offset:{e*1024}")
        if t < NT - 1: P(f"s_add_u32 s{sOoff}, s{sOoff}, {128*1024}")
    P(f"s_branch attn_fin")
    for t in range(NT): rare_path(P, t, lab)

def w_dma(P):
    P(f"s_add_u32 s{sA}, s{sWI}, s{sWm0}")
    for e in range(2):
        P(f"s_add_u32 m0, s{sA}, {e*2080}")
        P(f"s_add_u32 s{sA2}, s{sWoff}, {e*8192}")
        P(f"buffer_load_dwordx4 v{vWd}, s[12:15], s{sA2} offen lds")
        P(f"s_add_u32 s{sA2}, s{sWoff}, {e*8192 + 131072 - 1024}")
        P(f"buffer_load_dwordx4 v{vWd}, s[12:15], s{sA2} offen offset:1024 lds")
    P(f"s_add_u32 s{sWoff}, s{sWoff}, {32*8192}")
    P(f"s_add_u32 s{sWI}, s{sWI}, {WSLOT}")
    P(f"s_cmp_ge_u32 s{sWI}, {3*WSLOT}")
    P(f"s_cselect_b32 s{sWI}, 0, s{sWI}")

def x_dma(P):
    P(f"s_add_u32 s{sA}, s{sXI}, s{sXm0}")
    for n in range(4):
        P(f"s_add_u32 m0, s{sA}, {n*4096}")
        P(f"s_add_u32 s{sA2}, s{sXoff}, {n*36864}")
        P(f"buffer_load_dwordx4 v{vXd}, s[8:11], s{sA2} offen lds")
    P(f"s_add_u32 m0, s{sA}, s{sX5m}")
    P(f"s_add_u32 s{sA2}, s{sXoff}, s{sX5o}")
    P(f"buffer_load_dwordx4 v{vXd}, s[8:11], s{sA2} offen lds")
    P(f"s_add_u32 s{sXoff}, s{sXoff}, 128")
    P(f"s_sub_u32 s{sXI}, {XSLOT}, s{sXI}")

def gen_attn():
    P = Prog()
    P("attn_kernel:")
    P("s_cmp_ge_u32 s2, 256")
    P("s_cbranch_scc1 attn_end")
    stamp(P, 0)
    P("s_load_dwordx4 s[4:7], s[0:1], 0")
    P("s_load_dwordx4 s[24:27], s[0:1], 16")
    P("s_load_dwordx2 s[28:29], s[0:1], 56")
    P(f"v_lshrrev_b32 v1, 6, v0")
    P(f"v_and_b32 v{vLane}, 63, v0")
    P(f"v_readfirstlane_b32 s{sWave}, v1")
    P(f"s_and_b32 s{sA}, s2, 7")
    P(f"s_lshr_b32 s{sA2}, s2, 3")
    P(f"s_and_b32 s{sB}, s{sA}, 1")
    P(f"s_lshl_b32 s{sB}, s{sB}, 3")
    P(f"s_lshr_b32 s{sCnt}, s{sA2}, 2")
    P(f"s_add_u32 s{sB}, s{sB}, s{sCnt}")
    P(f"s_lshr_b32 s{sHP}, s{sA}, 1")
    P(f"s_lshl_b32 s{sHP}, s{sHP}, 2")
    P(f"s_and_b32 s{sCnt}, s{sA2}, 3")
    P(f"s_add_u32 s{sHP}, s{sHP}, s{sCnt}")
    P(f"s_lshr_b32 s{sHead}, s{sWave}, 2")
    P(f"s_and_b32 s{sKVsel}, s{sWave}, 1")
    P(f"s_lshr_b32 s{sHalf}, s{sWave}, 1")
    P(f"s_and_b32 s{sHalf}, s{sHalf}, 1")
    P(f"s_lshl_b32 s{sLi}, s{sHead}, 1")
    P(f"s_add_u32 s{sLi}, s{sLi}, s{sKVsel}")
    L = vLane
    P(f"v_lshrrev_b32 v{vT0}, 4, v{L}")
    P(f"v_and_b32 v{vT1}, 15, v{L}")
    P(f"v_lshlrev_b32 v{vDma}, 11, v{vT0}")
    P(f"v_lshl_add_u32 v{vDma}, v{vT1}, 4, v{vDma}")
    P(f"v_lshrrev_b32 v{vT2}, 5, v{L}")
    P(f"v_lshlrev_b32 v{vWd}, 15, v{vT2}")
    P(f"v_and_b32 v{vT2}, 31, v{L}")
    P(f"v_lshl_add_u32 v{vWd}, v{vT2}, 4, v{vWd}")
    P(f"s_lshl_b32 s{sA}, s{sKVsel}, 2")
    P(f"v_add_u32 v{vT2}, s{sA}, v{vT0}")
    P(f"v_and_b32 v{vT3}, 7, v{L}")
    P(f"v_xor_b32 v{vT2}, v{vT2}, v{vT3}")
    P(f"v_lshrrev_b32 v{vT3}, 3, v{L}")
    P(f"v_mul_u32_u24 v{vXd}, 1152, v{vT3}")
    P(f"v_lshl_add_u32 v{vXd}, v{vT2}, 4, v{vXd}")
    P(f"s_lshl_b32 s{sKVoff}, s{sB}, 5")
    P(f"s_lshl_b32 s{sA}, s{sHP}, 1")
    P(f"s_add_u32 s{sKVoff}, s{sKVoff}, s{sA}")
    P(f"s_add_u32 s{sKVoff}, s{sKVoff}, s{sHead}")
    P(f"s_lshl_b32 s{sKVoff}, s{sKVoff}, 18")
    P(f"s_mul_i32 s{sKVm0}, s{sLi}, {BLK}")
    P("s_waitcnt lgkmcnt(0)")
    P(f"s_cmp_eq_u32 s{sKVsel}, 0")
    P("s_cselect_b32 s16, s6, s24")
    P("s_cselect_b32 s17, s7, s25")
    P("s_mov_b32 s18, 0x8000000")
    P("s_mov_b32 s19, 0x20000")
    P("s_mov_b32 s8, s4\ns_mov_b32 s9, s5\ns_mov_b32 s10, 2654208\ns_mov_b32 s11, 0x20000")
    P("s_mov_b32 s12, s26\ns_mov_b32 s13, s27\ns_mov_b32 s14, 4718592\ns_mov_b32 s15, 0x20000")
    P(f"s_cmp_eq_u32 s{sHalf}, 0")
    P("s_cbranch_scc0 attn_loader")
    for st in range(2):
        for q in range(8):
            P(f"s_add_u32 m0, s{sKVm0}, {st*STG + q*800}")
            if q == 0: P(f"s_add_u32 s{sA}, s{sKVoff}, {st*8192}")
            else: P("s_nop 0")
            P(f"buffer_load_dwordx4 v{vDma}, s[16:19], s{sA} offen offset:{q*256} {NT_FLAG} lds")
    P("s_branch attn_common")
    P("attn_loader:")
    P(f"s_lshl_b32 s{sWoff}, s{sHead}, 16")
    P(f"s_lshl_b32 s{sA}, s{sKVsel}, 14")
    P(f"s_add_u32 s{sWoff}, s{sWoff}, s{sA}")
    P(f"s_lshl_b32 s{sA}, s{sHP}, 9")
    P(f"s_add_u32 s{sWoff}, s{sWoff}, s{sA}")
    P(f"s_mul_i32 s{sWm0}, s{sLi}, {2*2080}")
    P(f"s_add_u32 s{sWm0}, s{sWm0}, {WBASE}")
    P(f"s_mul_i32 s{sXoff}, s{sB}, 165888")
    P(f"s_mul_i32 s{sA}, s{sLi}, 9216")
    P(f"s_add_u32 s{sXoff}, s{sXoff}, s{sA}")
    P(f"s_lshl_b32 s{sXm0}, s{sLi}, 10")
    P(f"s_add_u32 s{sXm0}, s{sXm0}, {XBASE}")
    P(f"s_cmp_lt_u32 s{sLi}, 2")
    P(f"s_mov_b32 s{sA}, {3*4096}")
    P(f"s_cselect_b32 s{sX5m}, {4*4096}, s{sA}")
    P(f"s_mov_b32 s{sA}, {3*36864}")
    P(f"s_cselect_b32 s{sX5o}, {4*36864}, s{sA}")
    P(f"s_mov_b32 s{sWI}, 0")
    P(f"s_mov_b32 s{sXI}, 0")
    x_dma(P); w_dma(P); w_dma(P)
    P("attn_common:")
    P(f"s_mul_i32 s{sA}, s{sHalf}, {4*1056}")
    P(f"s_add_u32 s{sKVm0}, s{sKVm0}, s{sA}")
    P(f"s_lshl_b32 s{sA}, s{sHalf}, 10")
    P(f"s_add_u32 s{sKVoff}, s{sKVoff}, s{sA}")
    P(f"s_add_u32 s{sKVoff}, s{sKVoff}, {2*8192}")
    P(f"s_mov_b32 s{sISlot}, {2*STG}")
    P(f"s_and_b32 s{sA}, s{sWave}, 3")
    P(f"s_lshl_b32 s{sT0}, s{sA}, 1")
    P(f"s_add_u32 s{sT0}, s{sT0}, 1")
    P(f"s_sub_u32 s{sA2}, 3, s{sHead}")
    P(f"s_cmp_eq_u32 s{sA}, 1")
    P(f"s_cselect_b32 s{sT0}, s{sA2}, s{sT0}")
    P(f"s_cmp_eq_u32 s{sA}, 0")
    P(f"s_cselect_b32 s{sT0}, 0, s{sT0}")
    P(f"v_and_b32 v{vT2}, 7, v{L}")
    P(f"v_mul_u32_u24 v{vKa0}, 1056, v{vT2}")
    P(f"v_bfe_u32 v{vT2}, v{L}, 3, 1")
    P(f"v_lshl_add_u32 v{vKa0}, v{vT2}, 8, v{vKa0}")
    P(f"v_lshl_add_u32 v{vKa0}, v{vT0}, 4, v{vKa0}")
    P(f"s_mul_i32 s{sA}, s{sHead}, {2*BLK}")
    P(f"v_add_u32 v{vKa0}, s{sA}, v{vKa0}")
    P(f"v_bfe_u32 v{vT2}, v{L}, 2, 3")
    P(f"v_lshrrev_b32 v{vT3}, 5, v{L}")
    P(f"v_mul_u32_u24 v{vVa0}, 1056, v{vT2}")
    P(f"v_lshl_add_u32 v{vVa0}, v{vT3}, 8, v{vVa0}")
    P(f"v_mul_u32_u24 v{vWa0}, 2080, v{vT2}")
    P(f"v_lshl_add_u32 v{vWa0}, v{vT3}, 10, v{vWa0}")
    P(f"v_and_b32 v{vT2}, 3, v{L}")
    P(f"v_lshl_add_u32 v{vVa0}, v{vT2}, 3, v{vVa0}")
    P(f"v_lshl_add_u32 v{vWa0}, v{vT2}, 3, v{vWa0}")
    P(f"s_add_u32 s{sA}, s{sA}, {BLK}")
    P(f"v_add_u32 v{vVa0}, s{sA}, v{vVa0}")
    P(f"s_lshl_b32 s{sA}, s{sHead}, 8")
    P(f"s_add_u32 s{sA}, s{sA}, {WBASE}")
    P(f"v_add_u32 v{vWa0}, s{sA}, v{vWa0}")
    P(f"v_lshrrev_b32 v{vT2}, 1, v{vT1}")
    P(f"v_xor_b32 v{vT2}, v{vT2}, v{vT0}")
    P(f"v_lshlrev_b32 v{vXa00}, 7, v{vT1}")
    P(f"v_lshl_add_u32 v{vXa00}, v{vT2}, 4, v{vXa00}")
    P(f"s_lshl_b32 s{sA}, s{sT0}, 11")
    P(f"s_add_u32 s{sA}, s{sA}, {XBASE}")
    P(f"v_add_u32 v{vXa00}, s{sA}, v{vXa00}")
    P(f"v_xor_b32 v{vXa01}, 64, v{vXa00}")
    P("s_mov_b32 s20, s28\ns_mov_b32 s21, s29\ns_mov_b32 s22, 0x8000000\ns_mov_b32 s23, 0x20000")
    P(f"s_mul_i32 s{sOoff}, s{sB}, 9")
    P(f"s_add_u32 s{sOoff}, s{sOoff}, s{sT0}")
    P(f"s_lshl_b32 s{sOoff}, s{sOoff}, 7")
    P(f"s_lshl_b32 s{sA}, s{sHP}, 3")
    P(f"s_add_u32 s{sOoff}, s{sOoff}, s{sA}")
    P(f"s_lshl_b32 s{sA}, s{sHead}, 2")
    P(f"s_add_u32 s{sOoff}, s{sOoff}, s{sA}")
    P(f"s_lshl_b32 s{sOoff}, s{sOoff}, 10")
    P(f"v_lshlrev_b32 v{vOst}, 4, v{L}")
    P(f"s_mov_b32 s{sScale}, {hex(f2u(QSCALE))}")
    P(f"s_mov_b32 s{sWR}, 0")
    P(f"s_mov_b32 s{sXR}, 0")
    for i in range(96): P(f"v_mov_b32 v{vO+i}, 0")
    for i in range(16): P(f"v_mov_b32 v{KV(4)+i}, 0")
    for i in range(12): P(f"v_mov_b32 v{BB(1,0)+i}, 0")
    assert XBASE % 128 == 0
    P(f"s_cmp_eq_u32 s{sWave}, 0")
    P("s_cbranch_scc1 attn_nt3")
    P(f"s_cmp_eq_u32 s{sWave}, 5")
    P("s_cbranch_scc1 attn_nt3")
    return P

def finish_attn(P):
    P("attn_fin:")
    if STAMPS:
        P("s_waitcnt vmcnt(0)")
        stamp(P, 4)
        P("s_getreg_b32 s72, hwreg(HW_REG_XCC_ID)")
        P("s_mov_b32 s73, 0")
        P("s_waitcnt lgkmcnt(0)")
        P(f"s_cmp_lg_u32 s{sWave}, 0")
        P("s_cbranch_scc1 attn_end")
        P(f"s_lshl_b32 s{sA}, s2, 6")
        P(f"s_add_u32 s{sA}, s{sA}, {WS_STAMP}")
        P("v_mov_b32 v8, 0")
        P(f"v_cmp_eq_u32 vcc, 0, v{vLane}")
        P("s_and_saveexec_b64 s[74:75], vcc")
        for i in range(7):
            P(f"v_mov_b32 v4, s{sSt+2*i}\nv_mov_b32 v5, s{sSt+2*i+1}")
            P(f"buffer_store_dwordx2 v[4:5], v8, s[20:23], s{sA} offen offset:{8*i}")
            P("s_nop 1")
    P("attn_end:")
    P("s_endpgm")

def kd(name, vgpr, sgpr=102, acc=None):
    acc = acc or ((vgpr + 3) // 4 * 4)
    return f""".p2align 6
.amdhsa_kernel {name}
  .amdhsa_next_free_vgpr {vgpr}
  .amdhsa_next_free_sgpr {sgpr}
  .amdhsa_accum_offset {acc}
  .amdhsa_group_segment_fixed_size 0
  .amdhsa_kernarg_size 64
  .amdhsa_user_sgpr_count 2
  .amdhsa_user_sgpr_kernarg_segment_ptr 1
  .amdhsa_system_sgpr_workgroup_id_x 1
  .amdhsa_float_denorm_mode_32 3
.end_amdhsa_kernel
"""

def build_attn():
    P = gen_attn()
    attn_wave(P, 2, "a2")
    P("attn_nt3:")
    attn_wave(P, 3, "a3")
    finish_attn(P)
    return P

if __name__ == "__main__":
    import gen_oproj
    outp = sys.argv[1]
    kernels = []
    P = build_attn()
    kernels.append(("attn_kernel", P, 256, (256, 512, 163840)))
    kernels += gen_oproj.build()
    hdr = open("standalone__mha_block_cached__near_ridge.s.ref").read().split("; Override")[0]
    txt = hdr
    for name, _, _, (g, b, lds) in kernels:
        txt += f"; @launch kernel={name} grid=({g},1,1) block=({b},1,1) lds={lds}\n"
    txt += '.amdgcn_target "amdgcn-amd-amdhsa--gfx950"\n.text\n'
    for name, Pk, vg, _ in kernels:
        n = Pk.fix_hazards(verbose='-v' in sys.argv)
        errs = Pk.check_waits()
        print(f"{name}: {n} nops inserted, {len(errs)} wait errors, {sum(isinstance(i, Inst) for i in Pk.items)} insts", file=sys.stderr)
        for e in errs[:20]: print("   ", e, file=sys.stderr)
        txt += f".globl {name}\n.p2align 8\n.type {name},@function\n" + Pk.text()
    txt += '.section .rodata,"a"\n'
    for name, _, vg, _ in kernels:
        txt += kd(name, vg)
    open(outp, "w").write(txt)
```

```python
import re, sys

REG_RE = re.compile(r'^(-|\|)?(abs\()?([vsa])(\d+)\)?\|?$')
RNG_RE = re.compile(r'^(-)?([vsa])\[(\d+):(\d+)\]$')

def regs_of(op):
    op = op.strip()
    if op in ('vcc',): return ['vcc_lo', 'vcc_hi']
    if op in ('vcc_lo', 'vcc_hi', 'm0', 'scc'): return [op]
    if op == 'exec': return ['exec']
    m = RNG_RE.match(op)
    if m:
        return [f"{m.group(2)}{i}" for i in range(int(m.group(3)), int(m.group(4)) + 1)]
    m = REG_RE.match(op)
    if m:
        return [f"{m.group(3)}{m.group(4)}"]
    return []

TRANS = ('v_exp_f32', 'v_log_f32', 'v_rcp_f32', 'v_rsq_f32', 'v_sqrt_f32', 'v_sin_f32', 'v_cos_f32')

class Inst:
    def __init__(self, text, comment=None):
        self.text = text.strip()
        self.comment = comment
        t = self.text.split(';')[0].strip()
        parts = t.split(None, 1)
        self.op = parts[0]
        rest = parts[1] if len(parts) > 1 else ''
        ops = []; cur = ''; depth = 0
        for ch in rest:
            if ch in '[(': depth += 1
            if ch in '])': depth -= 1
            if ch == ',' and depth == 0:
                ops.append(cur.strip()); cur = ''
            else:
                cur += ch
        if cur.strip(): ops.append(cur.strip())
        self.mods = []
        if ops:
            toks = ops[-1].split()
            ops[-1] = toks[0]
            self.mods = toks[1:]
        self.ops = ops
        self.classify()

    def classify(self):
        op = self.op; ops = self.ops
        base = re.sub(r'_(e32|e64|dpp|sdwa)$', '', op)
        self.base = base
        self.reads = []; self.writes = []
        self.kind = 'other'
        self.srcc = []; self.srcab = []
        self.target = None
        R = lambda o: regs_of(o)
        if op.startswith('v_mfma'):
            self.kind = 'mfma'
            self.writes = R(ops[0]); self.srcab = R(ops[1]) + R(ops[2]); self.srcc = R(ops[3])
            self.reads = self.srcab + self.srcc
            self.passes = 8 if '32x32' in op else 4
        elif op.startswith('v_'):
            self.kind = 'valu'
            if base.startswith('v_permlane') and 'swap' in base:
                self.writes = R(ops[0]) + R(ops[1]); self.reads = R(ops[0]) + R(ops[1])
            elif base.startswith('v_cmp'):
                self.writes = R(ops[0]); self.reads = sum([R(o) for o in ops[1:]], [])
            elif base in ('v_add_co_u32', 'v_sub_co_u32', 'v_addc_co_u32', 'v_subb_co_u32'):
                self.writes = R(ops[0]) + R(ops[1]); self.reads = sum([R(o) for o in ops[2:]], [])
            elif base == 'v_nop':
                pass
            else:
                self.writes = R(ops[0]); self.reads = sum([R(o) for o in ops[1:]], [])
                if base.startswith('v_fmac') or base.startswith('v_pk_fmac') or base.startswith('v_writelane') or base.startswith('v_dot2c'):
                    self.reads += R(ops[0])
                if base == 'v_cndmask_b32' and len(ops) == 3:
                    self.reads += ['vcc_lo', 'vcc_hi']
            self.trans = base in TRANS
            self.dpp = op.endswith('_dpp') or any(m.startswith('row_') or m.startswith('quad_perm') for m in self.mods)
        elif op.startswith('ds_'):
            self.kind = 'ds'
            if op.startswith('ds_read') or op.startswith('ds_bpermute') or op.startswith('ds_permute') or op.startswith('ds_swizzle') or '_rtn' in op:
                self.writes = R(ops[0]); self.reads = sum([R(o) for o in ops[1:]], [])
            else:
                self.reads = sum([R(o) for o in ops], [])
        elif op.startswith('buffer_') or op.startswith('global_'):
            self.kind = 'vmem'
            self.lds = 'lds' in self.mods or '_lds_' in op
            if op in ('buffer_wbl2', 'buffer_inv'):
                pass
            elif self.lds:
                self.reads = sum([R(o) for o in ops], []) + ['m0']
            elif '_load' in op:
                self.writes = R(ops[0]); self.reads = sum([R(o) for o in ops[1:]], [])
            elif '_atomic' in op:
                self.reads = sum([R(o) for o in ops], [])
                if 'sc0' in self.mods:
                    self.writes = R(ops[0])
            else:
                self.reads = sum([R(o) for o in ops], [])
                self.store_data = R(ops[0]) if op.startswith('buffer_') else R(ops[1])
                self.wide = op.endswith('x4') or op.endswith('x3')
        elif op.startswith('s_load') or op.startswith('s_memtime') or op.startswith('s_memrealtime') or op.startswith('s_buffer_load') or op.startswith('s_atomic'):
            self.kind = 'smem'
            self.writes = R(ops[0]); self.reads = sum([R(o) for o in ops[1:]], [])
        elif op == 's_waitcnt':
            self.kind = 'wait'
            txt = self.text
            m = re.search(r'vmcnt\((\d+)\)', txt); self.vm = int(m.group(1)) if m else None
            m = re.search(r'lgkmcnt\((\d+)\)', txt); self.lgkm = int(m.group(1)) if m else None
        elif op == 's_nop':
            self.kind = 'nop'; self.n = int(ops[0], 0)
        elif op in ('s_branch',) or op.startswith('s_cbranch'):
            self.kind = 'branch'; self.target = ops[0]
            if 'vcc' in op: self.reads = ['vcc_lo', 'vcc_hi']
            if 'scc' in op: self.reads = ['scc']
        elif op == 's_endpgm':
            self.kind = 'end'
        elif op in ('s_barrier', 's_setprio', 's_sleep', 's_sethalt'):
            self.kind = 'misc'
        elif op.startswith('s_'):
            self.kind = 'salu'
            if op.startswith('s_cmp') or op.startswith('s_bitcmp'):
                self.reads = sum([R(o) for o in ops], []); self.writes = ['scc']
            elif op.startswith('s_getreg'):
                self.writes = R(ops[0])
            else:
                self.writes = R(ops[0]); self.reads = sum([R(o) for o in ops[1:]], [])
                if 'saveexec' in op: self.writes += ['exec']
                if op.startswith('s_addk') or op.startswith('s_mulk'): self.reads += R(ops[0])
        else:
            raise ValueError("unknown op " + self.text)

    def states(self):
        return self.n + 1 if self.kind == 'nop' else 1

class Label:
    def __init__(self, name): self.name = name

class Raw:
    def __init__(self, text): self.text = text

def isv(r): return r[0] in 'va' and r[1:].isdigit()
def iss(r): return (r[0] == 's' and r[1:].isdigit()) or r.startswith('vcc')

def required(p, c):
    need = 0
    pw = set(p.writes);
    if p.kind == 'valu':
        vw = {r for r in pw if isv(r)}
        sw = {r for r in pw if iss(r)}
        if vw:
            if c.kind == 'mfma' and vw & set(c.reads): need = max(need, 2)
            if c.kind == 'valu':
                if c.base.startswith('v_permlane') and vw & set(c.reads): need = max(need, 2)
                if c.base in ('v_readfirstlane_b32', 'v_readlane_b32') and vw & set(c.reads): need = max(need, 1)
                if c.dpp and vw & set(c.reads): need = max(need, 2)
                if p.trans and not c.trans and vw & set(c.reads): need = max(need, 1)
            if p.trans and c.kind in ('mfma', 'vmem', 'ds') and vw & set(c.reads): need = max(need, 1)
        if sw:
            if c.kind == 'valu' and sw & set(c.reads):
                need = max(need, 4 if c.base in ('v_readlane_b32', 'v_writelane_b32') else 2)
            if c.kind == 'vmem' and sw & set(c.reads): need = max(need, 5)
            if c.kind in ('salu', 'smem') and sw & set(c.reads): need = max(need, 1)
        if 'exec' in pw: need = max(need, 5)
    if p.kind == 'mfma':
        P = p.passes
        big = {4: 8, 8: 12}[P]; ovl = {4: 6, 8: 10}[P]; war = {4: 3, 8: 7}[P]
        if c.kind == 'mfma':
            if pw & set(c.srcab): need = max(need, big)
            if pw & set(c.srcc):
                if not (c.srcc == p.writes and c.passes == P): need = max(need, ovl)
            elif pw & set(c.writes): need = max(need, ovl)
        elif c.kind in ('valu', 'vmem', 'ds'):
            if pw & (set(c.reads) | set(c.writes)): need = max(need, big)
            if c.kind == 'valu' and set(p.srcc) & set(c.writes): need = max(need, war)
            if c.kind in ('vmem', 'ds') and set(p.srcc) & set(c.writes): need = max(need, war)
    if p.kind == 'salu' and 'm0' in pw and c.kind == 'vmem' and getattr(c, 'lds', False): need = max(need, 1)
    if p.kind == 'vmem' and getattr(p, 'wide', False):
        if c.kind in ('valu', 'mfma') and set(p.store_data) & set(c.writes): need = max(need, 2)
        elif c.kind in ('ds', 'vmem') and set(p.store_data) & set(c.writes): need = max(need, 1)
    if p.kind == 'ds' and p.op.startswith('ds_write') and ('b128' in p.op or 'b96' in p.op):
        pass
    return need

MAXW = 13

class Prog:
    def __init__(self):
        self.items = []
        self.nlab = 0
    def __call__(self, text, comment=None):
        for line in text.split('\n'):
            line = line.strip()
            if not line: continue
            if line.endswith(':'):
                self.items.append(Label(line[:-1]))
            elif line.startswith('.') or line.startswith(';'):
                self.items.append(Raw(line))
            else:
                self.items.append(Inst(line, comment))
    def label(self, name): self.items.append(Label(name))
    def newlabel(self, p='L'):
        self.nlab += 1
        return f"{p}_{self.nlab}"
    def extend(self, insts):
        for i in insts:
            self(i) if isinstance(i, str) else self.items.append(i)

    def succ(self):
        labs = {it.name: i for i, it in enumerate(self.items) if isinstance(it, Label)}
        n = len(self.items)
        S = [[] for _ in range(n)]
        for i, it in enumerate(self.items):
            if isinstance(it, Inst):
                if it.kind == 'end': continue
                if it.kind == 'branch':
                    S[i].append(labs[it.target])
                    if it.op != 's_branch' and i + 1 < n: S[i].append(i + 1)
                    continue
            if i + 1 < n: S[i].append(i + 1)
        return S

    def find_hazards(self):
        S = self.succ()
        out = {}
        for i, p in enumerate(self.items):
            if not isinstance(p, Inst) or p.kind not in ('valu', 'mfma', 'salu', 'vmem'): continue
            stack = [(j, 0) for j in S[i]]
            seen = {}
            while stack:
                j, d = stack.pop()
                if d >= MAXW: continue
                if seen.get(j, 99) <= d: continue
                seen[j] = d
                c = self.items[j]
                if isinstance(c, Inst):
                    need = required(p, c)
                    if need > d:
                        out[j] = max(out.get(j, (0, None))[0], need - d), p
                    nd = d + c.states()
                else:
                    nd = d
                for k in S[j]: stack.append((k, nd))
        return out

    def fix_hazards(self, verbose=True):
        total = 0
        while True:
            h = self.find_hazards()
            if not h: break
            for j in sorted(h.keys(), reverse=True):
                miss, p = h[j]
                if verbose:
                    print(f"  nop {miss} before [{self.items[j].text}] after [{p.text}]", file=sys.stderr)
                self.items.insert(j, Inst(f"s_nop {miss-1}"))
                total += 1
                break_ = False
        return total

    def check_waits(self):
        S = self.succ()
        errs = set()
        start = 0
        seen = set()
        stack = [(0, (), ())]
        steps = 0
        while stack:
            pc, lq, vq = stack.pop()
            key = (pc, lq, vq)
            if key in seen: continue
            seen.add(key)
            steps += 1
            if steps > 2000000:
                print("check_waits: too many states", file=sys.stderr); break
            it = self.items[pc]
            if isinstance(it, Inst):
                touched = set(it.reads) | set(it.writes)
                for q, nm in ((lq, 'lgkm'), (vq, 'vm')):
                    for e in q:
                        if e[1] & touched:
                            if nm == 'vm' and it.kind == 'vmem' and not (e[1] & set(it.reads)): continue
                            errs.add((pc, nm, it.text, tuple(sorted(e[1] & touched))))
                if it.kind == 'wait':
                    if it.lgkm is not None:
                        if any(e[0] == 'S' for e in lq):
                            if it.lgkm == 0: lq = ()
                        else:
                            lq = lq[len(lq) - it.lgkm:] if it.lgkm < len(lq) and it.lgkm > 0 else (() if it.lgkm == 0 else lq)
                    if it.vm is not None:
                        vq = vq[len(vq) - it.vm:] if 0 < it.vm < len(vq) else (() if it.vm == 0 else vq)
                elif it.kind == 'ds':
                    lq = lq + (('D', frozenset(it.writes)),)
                    if len(lq) > 40: lq = lq[-40:]
                elif it.kind == 'smem':
                    lq = lq + (('S', frozenset(it.writes)),)
                elif it.kind == 'vmem' and it.op not in ('buffer_wbl2', 'buffer_inv'):
                    vq = vq + (('V', frozenset(it.writes)),)
                    if not any(e[1] for e in vq): vq = ()
                    if len(vq) > 70: vq = vq[-70:]
                if lq and not any(e[1] for e in lq): lq = ()
            for k in S[pc]: stack.append((k, lq, vq))
        return sorted(errs)

    def text(self):
        out = []
        for it in self.items:
            if isinstance(it, Label): out.append(f"{it.name}:")
            elif isinstance(it, Raw): out.append(it.text)
            else: out.append("    " + it.text + (f"    ; {it.comment}" if it.comment else ""))
        return "\n".join(out) + "\n"

class LgkmTracker:
    def __init__(self): self.q = []
    def issue(self, regs): self.q.append(set(regs))
    def need(self, regs):
        regs = set(regs)
        last = -1
        for i, e in enumerate(self.q):
            if e & regs: last = i
        if last < 0: return None
        n = len(self.q) - 1 - last
        self.q = self.q[last + 1:]
        return n
    def clear(self): self.q = []

def insert_lgkm_waits(insts, pending=None, group=1):
    q = [set(p) for p in pending] if pending else []
    out = []
    parsed = [None if (s.endswith(':') or s.startswith(';') or s.startswith('.')) else Inst(s) for s in insts]
    def lastdep(I, qq):
        regs = set(I.reads) | set(I.writes)
        last = -1
        for i, e in enumerate(qq):
            if e & regs: last = i
        return last
    for idx, s in enumerate(insts):
        I = parsed[idx]
        if I is None:
            out.append(s); continue
        if I.kind == 'wait':
            if I.lgkm is not None:
                q = q[len(q) - I.lgkm:] if 0 < I.lgkm < len(q) else ([] if I.lgkm == 0 else q)
            out.append(s); continue
        last = lastdep(I, q)
        if last >= 0:
            found = 1
            j = idx + 1
            while found < group and j < len(insts):
                J = parsed[j]
                if J is not None:
                    l2 = lastdep(J, q)
                    if l2 > last:
                        last = l2; found += 1
                j += 1
            n = len(q) - 1 - last
            if n > 15: n = 15
            q = q[len(q) - n:] if n > 0 else []
            out.append(f"s_waitcnt lgkmcnt({n})")
        out.append(s)
        if I.kind == 'ds': q.append(set(I.writes))
    return out, q

def interleave(main, fill, first=0, per=None, pattern=None):
    out = []
    n = len(main)
    slots = n - first
    k = 0
    for i, m in enumerate(main):
        out.append(m)
        if i >= first and slots > 0:
            tgt = round((i - first + 1) * len(fill) / slots)
            while k < tgt:
                out.append(fill[k]); k += 1
    out.extend(fill[k:])
    return out
```

```python
import sys, math, struct
from asmgen import *

def f2u(x): return struct.unpack('<I', struct.pack('<f', x))[0]

STAMPS = '--stamps' in sys.argv
EXP = [a[2:] for a in sys.argv if a.startswith('-X')]
NT_FLAG = "nt"

LDS = 81920
BLK = 8448
NSLOT = 9
RING = NSLOT * BLK
XSLOT = 18432
WSLOT = BLK
XBASE = LDS - 2 * XSLOT - 3 * WSLOT
WBASE = XBASE + 2 * XSLOT
WS_O = 0
WS_PART = 32 << 20
WS_STAMP = 64 << 20
OOB = 0x10000000
QSCALE = math.log2(math.e) / math.sqrt(128.0)
THR = 256.0

vO = 0; vQ = 96; vKV = 144; vS = 176; vP = 200; vPb = 208; vNM = 220; vL = 232
vPS = 235; vPS2 = 236; vKa = 237; vVa = 238; vKa0 = 239; vVa0 = 240; vDma = 241
vWa0 = 242; vXa00 = 243; vXa01 = 244; vWa = 245; vXa = 246; vXd0 = 247; vXd1 = 248; vWd = 249; vLane = 250; vT0 = 251; vT1 = 252; vT2 = 253; vT3 = 254; vOst = 255
def vr(a, n=1): return f"v{a}" if n == 1 else f"v[{a}:{a+n-1}]"
def O(t, d): return vO + t * 32 + d * 4
def Q(t, c): return vQ + t * 16 + c * 4
def KV(j): return vKV + j * 4
def S(t, kt): return vS + t * 8 + kt * 4
def Pb(t): return vPb + t * 4
def NM(t): return vNM + t * 4
def BB(buf, t): return vQ + buf * 12 + t * 4

MF = "v_mfma_f32_16x16x32_bf16"
def mfma(d, a, b, c): return f"{MF} {vr(d,4)}, {vr(a,4)}, {vr(b,4)}, {vr(c,4) if c is not None else 0}"

sWave=30; sB=31; sHead=32; sAB=33; sKVsel=34; sHalf=35; sT0=36; sKVoff=37; sKVm0=38; sISlot=39; sRK=40; sCnt=41; sThr=42; sFloor=43
sA=44; sA2=45; sWoff=46; sXoff=47; sWI=48; sWR=49; sXI=50; sXR=51; sRV=52; sXm0=53; sLim=54; sOoff=56; sScale=57; sLi=58; sXend=59
sWm=82
sSt=60

def stamp(P, i):
    if STAMPS:
        P(f"s_memrealtime s[{sSt+2*i}:{sSt+2*i+1}]")
        if i: P("s_waitcnt lgkmcnt(0)")

def sm_list(t, lab):
    E = [f"v_exp_f32 {vr(vP+i)}, {vr(S(t,0)+i)}" for i in range(8)]
    out = [E[0], E[1], E[2], E[3]]
    out.append(f"v_add_f32 {vr(vPS)}, {vr(vP)}, {vr(vP+1)}")
    out.append(E[4])
    out.append(f"v_add_f32 {vr(vPS2)}, {vr(vP+2)}, {vr(vP+3)}")
    out.append(E[5])
    out.append(f"v_cvt_pk_bf16_f32 {vr(Pb(t))}, {vr(vP)}, {vr(vP+1)}")
    out.append(E[6])
    out.append(f"v_add_f32 {vr(vPS)}, {vr(vPS)}, {vr(vP+4)}")
    out.append(E[7])
    out.append(f"v_add_f32 {vr(vPS2)}, {vr(vPS2)}, {vr(vP+5)}")
    out.append(f"v_cvt_pk_bf16_f32 {vr(Pb(t)+1)}, {vr(vP+2)}, {vr(vP+3)}")
    out.append(f"v_add_f32 {vr(vPS)}, {vr(vPS)}, {vr(vP+6)}")
    out.append(f"v_add_f32 {vr(vPS2)}, {vr(vPS2)}, {vr(vP+7)}")
    out.append(f"v_cvt_pk_bf16_f32 {vr(Pb(t)+2)}, {vr(vP+4)}, {vr(vP+5)}")
    out.append(f"v_add_f32 {vr(vPS)}, {vr(vPS)}, {vr(vPS2)}")
    out.append(f"v_cvt_pk_bf16_f32 {vr(Pb(t)+3)}, {vr(vP+6)}, {vr(vP+7)}")
    out.append(f"v_cmp_nge_f32 vcc, s{sThr}, {vr(vPS)}")
    out.append(f"s_cbranch_vccnz {lab}_rare{t}")
    out.append(f"{lab}_back{t}:")
    out.append(f"v_add_f32 {vr(vL+t)}, {vr(vL+t)}, {vr(vPS)}")
    return out

def rare_path(P, t, lab):
    P(f"{lab}_rare{t}:")
    P("s_nop 7")
    s = S(t, 0)
    P(f"v_max3_f32 v{vT0}, v{s}, v{s+1}, v{s+2}")
    P(f"v_max3_f32 v{vT0}, v{vT0}, v{s+3}, v{s+4}")
    P(f"v_max3_f32 v{vT0}, v{vT0}, v{s+5}, v{s+6}")
    P(f"v_max_f32 v{vT0}, v{vT0}, v{s+7}")
    P(f"v_mov_b32 v{vT1}, v{vT0}")
    P(f"v_permlane32_swap_b32 v{vT0}, v{vT1}")
    P(f"v_max_f32 v{vT0}, v{vT0}, v{vT1}")
    P(f"v_mov_b32 v{vT1}, v{vT0}")
    P(f"v_permlane16_swap_b32 v{vT0}, v{vT1}")
    P(f"v_max_f32 v{vT0}, v{vT0}, v{vT1}")
    P(f"v_max_f32 v{vT0}, s{sFloor}, v{vT0}")
    P(f"v_max_f32 v{vT1}, 0, v{vT0}")
    P(f"v_exp_f32_e64 v{vT1}, -v{vT1}")
    for i in range(4): P(f"v_sub_f32 v{NM(t)+i}, v{NM(t)+i}, v{vT0}")
    P(f"v_mul_f32 v{vL+t}, v{vL+t}, v{vT1}")
    for i in range(32): P(f"v_mul_f32 v{O(t,0)+i}, v{O(t,0)+i}, v{vT1}")
    for i in range(8): P(f"v_sub_f32 v{s+i}, v{s+i}, v{vT0}")
    for i in range(8): P(f"v_exp_f32 v{vP+i}, v{s+i}")
    P(f"v_add_f32 v{vPS}, v{vP}, v{vP+1}")
    for i in range(2, 8): P(f"v_add_f32 v{vPS}, v{vPS}, v{vP+i}")
    for i in range(4): P(f"v_cvt_pk_bf16_f32 v{Pb(t)+i}, v{vP+2*i}, v{vP+2*i+1}")
    P("s_nop 1")
    P(f"s_branch {lab}_back{t}")

def kv_dma(soff, slot):
    L = []
    for jj in range(4):
        if jj == 0: L.append(f"s_add_u32 m0, {slot}, s{sKVm0}")
        else: L.append(f"s_add_u32 m0, m0, 800")
        L.append(f"buffer_load_dwordx4 v{vDma}, s[16:19], s{soff} offen offset:{jj*256} {NT_FLAG} lds")
    return L

def place(M, fills):
    out = []
    for i, m in enumerate(M):
        out.append(m)
        out.extend(fills.get(i, []))
    return out

def spread(fills, lst, i0, i1):
    n = i1 - i0 + 1
    k = 0
    for i in range(n):
        tgt = round((i + 1) * len(lst) / n)
        fills.setdefault(i0 + i, []).extend(lst[k:tgt]); k = tgt

def qk(t): return [mfma(S(t, j // 4), KV(j), Q(t, j % 4), NM(t) if j % 4 == 0 else S(t, j // 4)) for j in range(8)]
def pv(t): return [mfma(O(t, j), KV(j), Pb(t), O(t, j)) for j in range(8)]
def kread(j): return f"ds_read_b128 {vr(KV(j),4)}, v{vKa} offset:{(j//4)*512 + (j%4)*64}"
def vread(j): return [f"ds_read_b64_tr_b16 {vr(KV(j),2)}, v{vVa} offset:{j*32}", f"ds_read_b64_tr_b16 {vr(KV(j)+2,2)}, v{vVa} offset:{j*32+512}"]

def w_dma():
    L = []
    for e in range(3):
        L.append(f"s_add_u32 m0, s{sWI}, s{sWm+e}")
        L.append(f"s_add_u32 s{sA2}, s{sWoff}, s{sWm+3+e}")
        L.append(f"buffer_load_dwordx4 v{vWd}, s[12:15], s{sA2} offen lds")
    L.append(f"s_add_u32 s{sWoff}, s{sWoff}, {32*8192}")
    L.append(f"s_sub_u32 s{sA}, s{sWoff}, {576*8192}")
    L.append(f"s_cmp_ge_u32 s{sWoff}, {576*8192}")
    L.append(f"s_cselect_b32 s{sWoff}, s{sA}, s{sWoff}")
    L.append(f"s_add_u32 s{sWI}, s{sWI}, {WSLOT}")
    L.append(f"s_cmp_ge_u32 s{sWI}, {3*WSLOT}")
    L.append(f"s_cselect_b32 s{sWI}, 0, s{sWI}")
    return L

def x_dma():
    L = []
    L.append(f"s_add_u32 s{sA}, s{sXI}, s{sXm0}")
    for n in range(6):
        L.append(f"s_add_u32 m0, s{sA}, {n*3072}")
        L.append(f"s_add_u32 s{sA2}, s{sXoff}, {n*3*9216}")
        L.append(f"buffer_load_dwordx4 v{vXd0 + (n & 1)}, s[8:11], s{sA2} offen lds")
    L.append(f"s_add_u32 s{sXoff}, s{sXoff}, 128")
    L.append(f"s_sub_u32 s{sA}, s{sXoff}, 1152")
    L.append(f"s_cmp_ge_u32 s{sXoff}, s{sXend}")
    L.append(f"s_cselect_b32 s{sXoff}, s{sA}, s{sXoff}")
    L.append(f"s_sub_u32 s{sXI}, {XSLOT}, s{sXI}")
    return L

def attn_wave(P, NT, lab):
    tl = NT - 1
    loader = (NT == 2)
    def wread(d): return [f"ds_read_b64_tr_b16 {vr(KV(d),2)}, v{vWa} offset:{d*32}", f"ds_read_b64_tr_b16 {vr(KV(d)+2,2)}, v{vWa} offset:{d*32+256}"]
    def xread(buf, t): return f"ds_read_b128 {vr(BB(buf,t),4)}, v{vXa} offset:{t*2048}"
    def qmf(d, buf): return [mfma(O(t, d), KV(d), BB(buf, t), O(t, d)) for t in range(NT)]
    P(f"s_mov_b32 s{sCnt}, 9")
    P(f"{lab}_qloop:")
    for par in range(2):
        if loader and 'qnowait' not in EXP: P(f"s_waitcnt vmcnt({3 if par == 0 else 9})")
        P("s_barrier")
        if STAMPS and par == 0:
            for (cv, si) in ((9, 5), (5, 6)):
                l2 = P.newlabel(lab + "_st")
                P(f"s_cmp_lg_u32 s{sCnt}, {cv}")
                P(f"s_cbranch_scc1 {l2}")
                stamp(P, si)
                P(f"{l2}:")
        body = []
        body.append(f"v_add_u32 v{vWa}, s{sWR}, v{vWa0}")
        body.append(f"v_add_u32 v{vXa}, s{sXR}, v{vXa00 + par}")
        M1 = sum([qmf(d, 1 - par) for d in range(4, 8)], [])
        M2 = sum([qmf(d, par) for d in range(4)], [])
        M = M1 + M2
        fills = {}
        rd = [xread(par, t) for t in range(NT)] + sum([wread(d) for d in range(4)], [])
        spread(fills, rd, 0, len(M1) - 2)
        rd = sum([wread(d) for d in range(4, 8)], [])
        spread(fills, rd, len(M1), len(M) - 3)
        if loader:
            dm = w_dma() + (x_dma() if par == 0 else [])
            spread(fills, dm, 0, len(M) - 1)
        body += place(M, fills)
        body.append(f"s_add_u32 s{sWR}, s{sWR}, {WSLOT}")
        body.append(f"s_cmp_ge_u32 s{sWR}, {3*WSLOT}")
        body.append(f"s_cselect_b32 s{sWR}, 0, s{sWR}")
        if par == 1:
            body.append(f"s_sub_u32 s{sXR}, {XSLOT}, s{sXR}")
            body.append(f"s_sub_u32 s{sCnt}, s{sCnt}, 1")
            body.append(f"s_cmp_lg_u32 s{sCnt}, 0")
        body.append("s_waitcnt lgkmcnt(0)")
        if 'qnomfma' in EXP: body = [x for x in body if not x.startswith('v_mfma')]
        if 'qnolds' in EXP: body = [x for x in body if not x.startswith('ds_read')]
        if 'qnox' in EXP: body = [x for x in body if not (x.startswith('buffer_load') and 's[8:11]' in x)]
        if 'qnow' in EXP: body = [x for x in body if not (x.startswith('buffer_load') and 's[12:15]' in x)]
        body, _ = insert_lgkm_waits(body)
        P.extend(body)
    P(f"s_cbranch_scc1 {lab}_qloop")
    if loader: P("s_waitcnt vmcnt(0)")
    P("s_barrier")
    stamp(P, 1)
    P(f"s_mul_i32 s{sISlot}, s{sKVsel}, {BLK}")
    for n in range(3):
        if n == 2:
            if NT == 2:
                P(f"s_cmp_lg_u32 s{sKVsel}, 0")
                P(f"s_cbranch_scc1 {lab}_nok3")
        P(f"s_add_u32 s{sISlot}, s{sISlot}, {2*BLK}")
        P.extend(kv_dma(sKVoff, f"s{sISlot}"))
        P(f"s_add_u32 s{sKVoff}, s{sKVoff}, 8192")
    P(f"{lab}_nok3:")
    P(f"s_mul_i32 s{sISlot}, s{sKVsel}, {BLK}")
    P(f"s_sub_u32 s{sISlot}, {8*BLK}, s{sISlot}")
    P.extend(sum([qmf(d, 1) for d in range(4, 8)], []))
    P("s_nop 7")
    for t in range(NT):
        for i in range(32): P(f"v_mul_f32 v{O(t,0)+i}, s{sScale}, v{O(t,0)+i}")
    for t in range(NT):
        for c in range(4):
            q = Q(t, c); a = O(t, 2 * c); b = O(t, 2 * c + 1)
            P(f"v_cvt_pk_bf16_f32 v{q}, v{a}, v{a+1}")
            P(f"v_cvt_pk_bf16_f32 v{q+1}, v{a+2}, v{a+3}")
            P(f"v_cvt_pk_bf16_f32 v{q+2}, v{b}, v{b+1}")
            P(f"v_cvt_pk_bf16_f32 v{q+3}, v{b+2}, v{b+3}")
    for t in range(NT):
        for c in range(4):
            q = Q(t, c)
            P(f"v_permlane32_swap_b32 v{q}, v{q+2}")
            P(f"v_permlane32_swap_b32 v{q+1}, v{q+3}")
    for t in range(NT):
        for c in range(4):
            q = Q(t, c)
            P(f"v_permlane16_swap_b32 v{q}, v{q+2}")
            P(f"v_permlane16_swap_b32 v{q+1}, v{q+3}")
    for t in range(NT):
        for i in range(32): P(f"v_mov_b32 v{O(t,0)+i}, 0")
        for i in range(4): P(f"v_mov_b32 v{NM(t)+i}, 0")
        for i in range(4): P(f"v_mov_b32 v{Pb(t)+i}, 0")
        P(f"v_mov_b32 v{vL+t}, 0")
    P(f"s_mov_b32 s{sCnt}, 0")
    P(f"s_mov_b32 s{sRK}, 0")
    P(f"s_mov_b32 s{sRV}, {BLK}")
    P(f"s_mov_b32 s{sThr}, {hex(f2u(-1.0))}")
    P(f"s_mov_b32 s{sFloor}, 0xff800000")
    if 'noprio' not in EXP:
        P(f"s_cmp_eq_u32 s{sAB}, 0")
        P(f"s_cbranch_scc1 {lab}_pa")
        P("s_setprio 1")
        P(f"s_branch {lab}_pb")
        P(f"{lab}_pa:")
        P("s_setprio 2")
        P(f"{lab}_pb:")
    stamp(P, 2)
    if STAMPS: P("s_memtime s[78:79]\ns_waitcnt lgkmcnt(0)")
    P(f"s_cmp_eq_u32 s{sKVsel}, 0")
    P(f"{lab}_loop:")
    if NT == 2:
        P(f"s_cmp_eq_u32 s{sKVsel}, 0")
        P(f"s_cbranch_scc1 {lab}_w12")
        P("s_waitcnt vmcnt(8)")
        P(f"{lab}_w12:")
    P("s_waitcnt vmcnt(12)")
    P("s_barrier")
    body = []
    body.append(f"v_add_u32 v{vKa}, s{sRK}, v{vKa0}")
    body.append(f"v_add_u32 v{vVa}, s{sRV}, v{vVa0}")
    body.append(f"s_cmp_ge_u32 s{sCnt}, s{sLim}")
    body.append(f"s_cselect_b32 s{sA}, {hex(OOB)}, s{sKVoff}")
    M = pv(tl) + sum([qk(t) for t in range(NT)], []) + sum([pv(t) for t in range(NT - 1)], [])
    fills = {}
    for j in range(8): fills.setdefault(j, []).append(kread(j))
    dma = kv_dma(sA, f"s{sISlot}")
    for j in range(8): fills[j].append(dma[j])
    base = 8 + 8 * tl
    for j in range(8): fills.setdefault(base + j, []).extend(vread(j))
    if NT == 3:
        spread(fills, sm_list(0, lab), 19, 26)
        spread(fills, sm_list(1, lab), 27, 34)
        spread(fills, sm_list(2, lab), 35, 43)
    else:
        spread(fills, sm_list(0, lab), 19, 23)
        spread(fills, sm_list(1, lab), 27, 31)
    misc = [f"s_add_u32 s{sKVoff}, s{sKVoff}, 8192",
            f"s_cmp_eq_u32 s{sKVsel}, 0",
            f"s_cselect_b32 s{sISlot}, s{sRV}, s{sRK}",
            f"s_add_u32 s{sRK}, s{sRK}, {2*BLK}",
            f"s_sub_u32 s{sA2}, s{sRK}, {RING}",
            f"s_cmp_ge_u32 s{sRK}, {RING}",
            f"s_cselect_b32 s{sRK}, s{sA2}, s{sRK}",
            f"s_add_u32 s{sRV}, s{sRV}, {2*BLK}",
            f"s_sub_u32 s{sA2}, s{sRV}, {RING}",
            f"s_cmp_ge_u32 s{sRV}, {RING}",
            f"s_cselect_b32 s{sRV}, s{sA2}, s{sRV}",
            f"s_add_u32 s{sCnt}, s{sCnt}, 1"]
    spread(fills, misc, 8, 18)
    body += place(M, fills)
    if 'nodma' in EXP: body = [x for x in body if not x.startswith('buffer_load')]
    body.append(f"s_mov_b32 s{sThr}, {hex(f2u(THR))}")
    body.append(f"s_mov_b32 s{sFloor}, 0")
    body.append(f"s_cmp_lt_u32 s{sCnt}, 32")
    body.append("s_waitcnt lgkmcnt(0)")
    body, _ = insert_lgkm_waits(body)
    P.extend(body)
    P(f"s_cbranch_scc1 {lab}_loop")
    P.extend(pv(tl))
    stamp(P, 3)
    if STAMPS: P("s_memtime s[80:81]\ns_waitcnt lgkmcnt(0)")
    for t in range(NT):
        l = vL + t
        P(f"v_mov_b32 v{vT1}, v{l}")
        P(f"v_permlane32_swap_b32 v{l}, v{vT1}")
        P(f"v_add_f32 v{l}, v{l}, v{vT1}")
        P(f"v_mov_b32 v{vT1}, v{l}")
        P(f"v_permlane16_swap_b32 v{l}, v{vT1}")
        P(f"v_add_f32 v{l}, v{l}, v{vT1}")
        P(f"v_rcp_f32 v{l}, v{l}")
    P("s_nop 7")
    for t in range(NT):
        for i in range(32): P(f"v_mul_f32 v{O(t,0)+i}, v{O(t,0)+i}, v{vL+t}")
        for e in range(4):
            q = Q(t, e); a = O(t, 2 * e); b = O(t, 2 * e + 1)
            P(f"v_cvt_pk_bf16_f32 v{q}, v{a}, v{a+1}")
            P(f"v_cvt_pk_bf16_f32 v{q+1}, v{a+2}, v{a+3}")
            P(f"v_cvt_pk_bf16_f32 v{q+2}, v{b}, v{b+1}")
            P(f"v_cvt_pk_bf16_f32 v{q+3}, v{b+2}, v{b+3}")
            P(f"buffer_store_dwordx4 {vr(q,4)}, v{vOst}, s[20:23], s{sOoff} offen offset:{e*1024}")
        if t < NT - 1: P(f"s_add_u32 s{sOoff}, s{sOoff}, {128*1024}")
    P(f"s_branch attn_fin")
    for t in range(NT): rare_path(P, t, lab)

def gen_attn():
    P = Prog()
    P("attn_kernel:")
    P(f"s_cmp_ge_u32 s2, {256 if 'onlyA' in EXP else 512}")
    P("s_cbranch_scc1 attn_end")
    stamp(P, 0)
    P("s_load_dwordx4 s[4:7], s[0:1], 0")
    P("s_load_dwordx4 s[24:27], s[0:1], 16")
    P("s_load_dwordx2 s[28:29], s[0:1], 56")
    P(f"v_lshrrev_b32 v1, 6, v0")
    P(f"v_and_b32 v{vLane}, 63, v0")
    P(f"v_readfirstlane_b32 s{sWave}, v1")
    P(f"s_lshr_b32 s{sAB}, s2, 8")
    if 'noprio' not in EXP:
        P(f"s_cmp_lg_u32 s{sAB}, 0")
        P("s_cbranch_scc1 attn_p0")
        P("s_setprio 3")
        P("attn_p0:")
    P(f"s_and_b32 s{sA}, s2, 7")
    P(f"s_bfe_u32 s{sA2}, s2, 0x50003")
    P(f"s_and_b32 s{sB}, s{sA}, 1")
    P(f"s_lshl_b32 s{sB}, s{sB}, 3")
    P(f"s_lshr_b32 s{sCnt}, s{sA2}, 2")
    P(f"s_add_u32 s{sB}, s{sB}, s{sCnt}")
    P(f"s_lshr_b32 s{sHead}, s{sA}, 1")
    P(f"s_lshl_b32 s{sHead}, s{sHead}, 2")
    P(f"s_and_b32 s{sCnt}, s{sA2}, 3")
    P(f"s_add_u32 s{sHead}, s{sHead}, s{sCnt}")
    P(f"s_lshl_b32 s{sHead}, s{sHead}, 1")
    P(f"s_add_u32 s{sHead}, s{sHead}, s{sAB}")
    P(f"s_and_b32 s{sKVsel}, s{sWave}, 1")
    P(f"s_lshr_b32 s{sHalf}, s{sWave}, 1")
    L = vLane
    P(f"v_lshrrev_b32 v{vT0}, 4, v{L}")
    P(f"v_and_b32 v{vT1}, 15, v{L}")
    P(f"v_lshlrev_b32 v{vDma}, 11, v{vT0}")
    P(f"v_lshl_add_u32 v{vDma}, v{vT1}, 4, v{vDma}")
    P(f"v_lshrrev_b32 v{vT2}, 5, v{L}")
    P(f"v_lshlrev_b32 v{vWd}, 17, v{vT2}")
    P(f"v_and_b32 v{vT2}, 1, v{vT0}")
    P(f"v_lshl_add_u32 v{vWd}, v{vT2}, 15, v{vWd}")
    P(f"v_lshl_add_u32 v{vWd}, v{vT1}, 4, v{vWd}")
    P(f"s_sub_u32 s{sLi}, s{sWave}, 1")
    P(f"s_and_b32 s{sA}, s{sLi}, 1")
    P(f"s_lshl_b32 s{sA}, s{sA}, 2")
    P(f"v_add_u32 v{vT2}, s{sA}, v{vT0}")
    P(f"v_and_b32 v{vT3}, 7, v{L}")
    P(f"v_xor_b32 v{vT2}, v{vT2}, v{vT3}")
    P(f"v_lshrrev_b32 v{vT3}, 3, v{L}")
    P(f"v_mul_u32_u24 v{vT3}, 1152, v{vT3}")
    P(f"v_lshl_add_u32 v{vXd0}, v{vT2}, 4, v{vT3}")
    P(f"v_xor_b32 v{vT2}, 4, v{vT2}")
    P(f"v_lshl_add_u32 v{vXd1}, v{vT2}, 4, v{vT3}")
    P(f"s_lshl_b32 s{sKVoff}, s{sB}, 5")
    P(f"s_add_u32 s{sKVoff}, s{sKVoff}, s{sHead}")
    P(f"s_lshl_b32 s{sKVoff}, s{sKVoff}, 18")
    P("s_waitcnt lgkmcnt(0)")
    P("s_mov_b32 s8, s4\ns_mov_b32 s9, s5\ns_mov_b32 s10, 2654208\ns_mov_b32 s11, 0x20000")
    P("s_mov_b32 s12, s26\ns_mov_b32 s13, s27\ns_mov_b32 s14, 4718592\ns_mov_b32 s15, 0x20000")
    P(f"s_cmp_eq_u32 s{sKVsel}, 0")
    P("s_cselect_b32 s16, s6, s24")
    P("s_cselect_b32 s17, s7, s25")
    P("s_mov_b32 s18, 0x8000000")
    P("s_mov_b32 s19, 0x20000")
    P("s_mov_b32 s26, 0x8000000")
    P("s_mov_b32 s27, 0x20000")
    P(f"s_cmp_eq_u32 s{sWave}, 0")
    P("s_cbranch_scc0 attn_loader")
    if 'notouch' not in EXP:
        TF = 'nt' if 'touchnt' in EXP else ''
        P(f"v_lshrrev_b32 v{vT2}, 1, v{L}")
        P(f"v_lshlrev_b32 v{vT2}, 13, v{vT2}")
        P(f"v_and_b32 v{vT3}, 1, v{L}")
        P(f"v_lshl_add_u32 v{vT2}, v{vT3}, 7, v{vT2}")
        P(f"s_and_b32 s{sA}, s{sB}, 7")
        P(f"s_mul_i32 s{sA}, s{sA}, {72*8192}")
        P(f"s_lshl_b32 s{sA2}, s{sHead}, 8")
        P(f"s_add_u32 s{sA}, s{sA}, s{sA2}")
        for n in range(3):
            P(f"buffer_load_dword v{vS+n}, v{vT2}, s[12:15], s{sA} offen {TF}")
            if n < 2: P(f"s_add_u32 s{sA}, s{sA}, {32*8192}")
        P(f"s_cmp_lg_u32 s{sAB}, 0")
        P("s_cbranch_scc1 attn_notx")
        P(f"v_lshlrev_b32 v{vT3}, 7, v{L}")
        P(f"s_bfe_u32 s{sA}, s2, 0x20003")
        P(f"s_mul_i32 s{sA}, s{sA}, 41472")
        P(f"s_mul_i32 s{sA2}, s{sB}, 165888")
        P(f"s_add_u32 s{sA}, s{sA}, s{sA2}")
        for n in range(6):
            P(f"buffer_load_dword v{vS+3+n}, v{vT3}, s[8:11], s{sA} offen {TF}")
            if n < 5: P(f"s_add_u32 s{sA}, s{sA}, 8192")
        P("attn_notx:")
    for blk, srd in ((0, "s[16:19]"), (1, "s[24:27]")):
        for q in range(0 if 'nopre' in EXP else 8):
            P(f"s_mov_b32 m0, {blk*BLK + q*800}")
            P("s_nop 0")
            P(f"buffer_load_dwordx4 v{vDma}, {srd}, s{sKVoff} offen offset:{q*256} {NT_FLAG} lds")
    P("s_branch attn_common")
    P("attn_loader:")
    for e in range(3):
        if e < 2:
            P(f"s_add_u32 s{sA}, s{sLi}, {3*e}")
        else:
            P(f"s_add_u32 s{sA}, s{sLi}, 6")
            P(f"s_cmp_gt_u32 s{sA}, 7")
            P(f"s_cselect_b32 s{sA}, 5, s{sA}")
        P(f"s_mul_i32 s{sWm+e}, s{sA}, 1056")
        P(f"s_add_u32 s{sWm+e}, s{sWm+e}, {WBASE}")
        P(f"s_lshr_b32 s{sA2}, s{sA}, 2")
        P(f"s_lshl_b32 s{sA2}, s{sA2}, 2")
        P(f"s_add_u32 s{sA2}, s{sA2}, s{sA}")
        P(f"s_lshl_b32 s{sWm+3+e}, s{sA2}, 13")
    P(f"s_lshl_b32 s{sWoff}, s{sHead}, 8")
    P(f"s_mul_i32 s{sXoff}, s{sB}, 165888")
    P(f"s_mul_i32 s{sA}, s{sLi}, 9216")
    P(f"s_add_u32 s{sXoff}, s{sXoff}, s{sA}")
    P(f"s_lshl_b32 s{sXm0}, s{sLi}, 10")
    P(f"s_add_u32 s{sXm0}, s{sXm0}, {XBASE}")
    P(f"s_add_u32 s{sXend}, s{sXoff}, 1152")
    if 'rot' in EXP:
        P(f"s_bfe_u32 s{sA}, s{sHead}, 0x20001")
        P(f"s_lshl_b32 s{sA}, s{sA}, 1")
        P(f"s_and_b32 s{sA2}, s{sB}, 7")
        P(f"s_add_u32 s{sA}, s{sA}, s{sA2}")
        P(f"s_sub_u32 s{sA2}, s{sA}, 9")
        P(f"s_cmp_ge_u32 s{sA}, 9")
        P(f"s_cselect_b32 s{sA}, s{sA2}, s{sA}")
        P(f"s_lshl_b32 s{sA2}, s{sA}, 7")
        P(f"s_add_u32 s{sXoff}, s{sXoff}, s{sA2}")
        P(f"s_lshl_b32 s{sA2}, s{sA}, 19")
        P(f"s_add_u32 s{sWoff}, s{sWoff}, s{sA2}")
    P(f"s_mov_b32 s{sWI}, 0")
    P(f"s_mov_b32 s{sXI}, 0")
    P.extend(x_dma()); P.extend(w_dma()); P.extend(w_dma())
    P("attn_common:")
    P(f"s_mul_i32 s{sKVm0}, s{sHalf}, {4*1056}")
    P(f"s_lshl_b32 s{sA}, s{sHalf}, 10")
    P(f"s_add_u32 s{sKVoff}, s{sKVoff}, s{sA}")
    P(f"s_add_u32 s{sKVoff}, s{sKVoff}, 8192")
    P(f"s_add_u32 s{sLim}, s{sKVsel}, 28")
    P(f"s_lshl_b32 s{sT0}, s{sWave}, 1")
    P(f"s_add_u32 s{sT0}, s{sT0}, 1")
    P(f"s_cmp_eq_u32 s{sWave}, 0")
    P(f"s_cselect_b32 s{sT0}, 0, s{sT0}")
    P(f"v_and_b32 v{vT2}, 7, v{L}")
    P(f"v_mul_u32_u24 v{vKa0}, 1056, v{vT2}")
    P(f"v_bfe_u32 v{vT2}, v{L}, 3, 1")
    P(f"v_lshl_add_u32 v{vKa0}, v{vT2}, 8, v{vKa0}")
    P(f"v_lshl_add_u32 v{vKa0}, v{vT0}, 4, v{vKa0}")
    P(f"v_bfe_u32 v{vT2}, v{L}, 2, 3")
    P(f"v_lshrrev_b32 v{vT3}, 5, v{L}")
    P(f"v_mul_u32_u24 v{vVa0}, 1056, v{vT2}")
    P(f"v_and_b32 v{vT2}, 3, v{L}")
    P(f"v_lshl_add_u32 v{vVa0}, v{vT2}, 3, v{vVa0}")
    P(f"v_lshl_add_u32 v{vWa0}, v{vT3}, 9, v{vVa0}")
    P(f"v_add_u32 v{vWa0}, {WBASE}, v{vWa0}")
    P(f"v_lshl_add_u32 v{vVa0}, v{vT3}, 8, v{vVa0}")
    P(f"v_lshrrev_b32 v{vT2}, 1, v{vT1}")
    P(f"v_xor_b32 v{vT2}, v{vT2}, v{vT0}")
    P(f"v_lshlrev_b32 v{vXa00}, 7, v{vT1}")
    P(f"v_lshl_add_u32 v{vXa00}, v{vT2}, 4, v{vXa00}")
    P(f"s_lshl_b32 s{sA}, s{sT0}, 11")
    P(f"s_add_u32 s{sA}, s{sA}, {XBASE}")
    P(f"v_add_u32 v{vXa00}, s{sA}, v{vXa00}")
    P(f"v_xor_b32 v{vXa01}, 64, v{vXa00}")
    assert XBASE % 128 == 0
    P("s_mov_b32 s20, s28\ns_mov_b32 s21, s29\ns_mov_b32 s22, 0x8000000\ns_mov_b32 s23, 0x20000")
    P(f"s_mul_i32 s{sOoff}, s{sB}, 9")
    P(f"s_add_u32 s{sOoff}, s{sOoff}, s{sT0}")
    P(f"s_lshl_b32 s{sOoff}, s{sOoff}, 7")
    P(f"s_lshl_b32 s{sA}, s{sHead}, 2")
    P(f"s_add_u32 s{sOoff}, s{sOoff}, s{sA}")
    P(f"s_lshl_b32 s{sOoff}, s{sOoff}, 10")
    P(f"v_lshlrev_b32 v{vOst}, 4, v{L}")
    P(f"s_mov_b32 s{sScale}, {hex(f2u(QSCALE))}")
    P(f"s_mov_b32 s{sWR}, 0")
    P(f"s_mov_b32 s{sXR}, 0")
    for i in range(96): P(f"v_mov_b32 v{vO+i}, 0")
    for i in range(16): P(f"v_mov_b32 v{KV(4)+i}, 0")
    for i in range(12): P(f"v_mov_b32 v{BB(1,0)+i}, 0")
    P(f"s_cmp_eq_u32 s{sWave}, 0")
    P("s_cbranch_scc1 attn_nt3")
    return P

def finish_attn(P):
    P("attn_fin:")
    if STAMPS:
        P("s_waitcnt vmcnt(0)")
        stamp(P, 4)
        P("s_sub_u32 s74, s80, s78")
        P("s_add_u32 s74, s74, s60")
        P("s_addc_u32 s75, s61, 0")
        P(f"s_cmp_lg_u32 s{sWave}, 0")
        P("s_cbranch_scc1 attn_end")
        P(f"s_lshl_b32 s{sA}, s2, 6")
        P(f"s_add_u32 s{sA}, s{sA}, {WS_STAMP + 0x40000}")
        P("v_mov_b32 v8, 0")
        P(f"v_cmp_eq_u32 vcc, 0, v{vLane}")
        P("s_and_saveexec_b64 s[76:77], vcc")
        for i in range(8):
            P(f"v_mov_b32 v4, s{sSt+2*i}\nv_mov_b32 v5, s{sSt+2*i+1}")
            P(f"buffer_store_dwordx2 v[4:5], v8, s[20:23], s{sA} offen offset:{8*i}")
            P("s_nop 1")
    P("attn_end:")
    P("s_endpgm")

def kd(name, vgpr, sgpr=102, acc=None):
    acc = acc or ((vgpr + 3) // 4 * 4)
    return f""".p2align 6
.amdhsa_kernel {name}
  .amdhsa_next_free_vgpr {vgpr}
  .amdhsa_next_free_sgpr {sgpr}
  .amdhsa_accum_offset {acc}
  .amdhsa_group_segment_fixed_size 0
  .amdhsa_kernarg_size 64
  .amdhsa_user_sgpr_count 2
  .amdhsa_user_sgpr_kernarg_segment_ptr 1
  .amdhsa_system_sgpr_workgroup_id_x 1
  .amdhsa_float_denorm_mode_32 3
.end_amdhsa_kernel
"""

def build_attn():
    P = gen_attn()
    attn_wave(P, 2, "a2")
    P("attn_nt3:")
    attn_wave(P, 3, "a3")
    finish_attn(P)
    return P

def write(outp, kernels):
    hdr = open("standalone__mha_block_cached__near_ridge.s.ref").read().split("; Override")[0]
    txt = hdr
    for name, _, _, (g, b, lds) in kernels:
        txt += f"; @launch kernel={name} grid=({g},1,1) block=({b},1,1) lds={lds}\n"
    txt += '.amdgcn_target "amdgcn-amd-amdhsa--gfx950"\n.text\n'
    for name, Pk, vg, _ in kernels:
        n = Pk.fix_hazards(verbose='-v' in sys.argv)
        errs = Pk.check_waits()
        print(f"{name}: {n} nops inserted, {len(errs)} wait errors, {sum(isinstance(i, Inst) for i in Pk.items)} insts", file=sys.stderr)
        for e in errs[:20]: print("   ", e, file=sys.stderr)
        txt += f".globl {name}\n.p2align 8\n.type {name},@function\n" + Pk.text()
    txt += '.section .rodata,"a"\n'
    for name, _, vg, _ in kernels:
        txt += kd(name, vg)
    if len(kernels) == 1:
        name = kernels[0][0]
        txt = txt.replace(f"; @launch kernel={name} ", "; @launch ").replace(name, "standalone__mha_block_cached__near_ridge_kernel")
    open(outp, "w").write(txt)

if __name__ == "__main__":
    import gen_oproj
    kernels = [("attn_kernel", build_attn(), 256, (512, 256, LDS))]
    if 'only1' not in EXP: kernels += gen_oproj.build()
    write(sys.argv[1], kernels)
```

```python
import sys
from asmgen import *
STAMPS = '--stamps' in sys.argv
WS_STAMP = 64 << 20
def stamp(P, i):
    if STAMPS:
        P(f"s_memrealtime s[{70+2*i}:{71+2*i}]")
        if i: P("s_waitcnt lgkmcnt(0)")
def stamp_out(P, n, off, wavereg, lanereg, endlab, srd):
    if not STAMPS: return
    P("s_waitcnt vmcnt(0)")
    stamp(P, n - 1)
    P(f"s_cmp_lg_u32 s{wavereg}, 0")
    P(f"s_cbranch_scc1 {endlab}")
    P(f"s_lshl_b32 s68, s2, 6")
    P(f"s_add_u32 s68, s68, {WS_STAMP + off}")
    P("v_mov_b32 v8, 0")
    P(f"v_cmp_eq_u32 vcc, 0, v{lanereg}")
    P("s_and_saveexec_b64 s[66:67], vcc")
    for i in range(n):
        P(f"v_mov_b32 v4, s{70+2*i}\nv_mov_b32 v5, s{71+2*i}")
        P(f"buffer_store_dwordx2 v[4:5], v8, {srd}, s68 offen offset:{8*i}")
        P("s_nop 1")
EXP = [a[2:] for a in sys.argv if a.startswith('-X')]
OFL = 'nt' if 'ont' in EXP else ''
WFL = 'nt' if 'wnt' in EXP else ''
WS_O = 0
WS_PART = 32 << 20
BSL = 18432; ASL = 19456; OST = BSL + ASL
NST = 4
MF = "v_mfma_f32_16x16x32_bf16"
def vr(a, n=1): return f"v{a}" if n == 1 else f"v[{a}:{a+n-1}]"
def mfma(d, a, b, c): return f"{MF} {vr(d,4)}, {vr(a,4)}, {vr(b,4)}, {vr(c,4)}"
vAcc = 0
def ACC(q, n, NN): return vAcc + (q * NN + n) * 4
def FB(buf, q): return 64 + buf * 32 + q * 4
def FA(buf, n): return 64 + buf * 32 + 20 + n * 4
vBa0 = 128; vAa0 = 129; vBa = 130; vAa = 131; vD = 132
vLane = 137; vT0 = 138; vT1 = 139; vT2 = 140; vT3 = 141; vT4 = 142; vSt = 143
sWave = 30; sB = 31; sKQ = 32; sNQ = 33; sA = 34; sA2 = 35; sQ0 = 36; sN0 = 37; sCnt = 38; sI = 39; sR = 40
sOff = 44
sLds = 50
sInc2 = 55; sPoff = 56

def place(M, fills):
    out = []
    for i, m in enumerate(M):
        out.append(m); out.extend(fills.get(i, []))
    return out
def spread(fills, lst, i0, i1):
    n = i1 - i0 + 1; k = 0
    for i in range(n):
        tgt = round((i + 1) * len(lst) / n)
        fills.setdefault(i0 + i, []).extend(lst[k:tgt]); k = tgt

sStg = 57; sNum = 58; sTB = 41; sTA = 42; sTM = 43
def dma():
    L = []
    srd = ["s[8:11]", "s[8:11]", "s[16:19]", "s[12:15]", "s[12:15]"]
    tt = [sTB, sTB, sTM, sTA, sTA]
    L.append(f"s_cmp_ge_u32 s{sNum}, 16")
    L.append(f"s_cselect_b32 s{sA2}, 0x10000, s{sStg}")
    L.append(f"s_lshl_b32 s{sTB}, s{sA2}, 11")
    L.append(f"s_mul_i32 s{sTA}, s{sA2}, 73728")
    L.append(f"s_mul_i32 s{sTM}, s{sA2}, s{sInc2}")
    for n in range(5):
        L.append(f"s_add_u32 m0, s{sI}, s{sLds+n}")
        L.append(f"s_add_u32 s{sA}, s{sOff+n}, s{tt[n]}")
        L.append(f"buffer_load_dwordx4 v{vD+n}, {srd[n]}, s{sA} offen {OFL if n < 2 else WFL} lds")
    L.append(f"s_add_u32 s{sStg}, s{sStg}, 1")
    L.append(f"s_and_b32 s{sStg}, s{sStg}, 15")
    L.append(f"s_add_u32 s{sNum}, s{sNum}, 1")
    L.append(f"s_add_u32 s{sI}, s{sI}, {OST}")
    L.append(f"s_cmp_ge_u32 s{sI}, {NST*OST}")
    L.append(f"s_cselect_b32 s{sI}, 0, s{sI}")
    return L

def a_voff(P, dst, sidx):
    P(f"s_lshl_b32 s{sA}, s{sidx}, 6")
    P(f"v_add_u32 v{vT0}, s{sA}, v{vLane}")
    P(f"v_cmp_le_u32 vcc, 592, v{vT0}")
    P(f"v_cndmask_b32 v{vT1}, 0, 1, vcc")
    P(f"v_mul_u32_u24 v{vT2}, 592, v{vT1}")
    P(f"v_sub_u32 v{vT2}, v{vT0}, v{vT2}")
    P(f"v_mul_u32_u24 v{vT3}, 886, v{vT2}")
    P(f"v_lshrrev_b32 v{vT3}, 16, v{vT3}")
    P(f"v_mul_u32_u24 v{vT4}, 74, v{vT3}")
    P(f"v_sub_u32 v{vT2}, v{vT2}, v{vT4}")
    P(f"v_lshl_add_u32 v{vT3}, v{vT1}, 5, v{vT3}")
    P(f"v_mul_u32_u24 v{vT4}, 3641, v{vT2}")
    P(f"v_lshrrev_b32 v{vT4}, 16, v{vT4}")
    P(f"v_lshl_add_u32 v{vT3}, v{vT4}, 3, v{vT3}")
    P(f"v_mul_u32_u24 v{vT4}, 18, v{vT4}")
    P(f"v_sub_u32 v{vT4}, v{vT2}, v{vT4}")
    P(f"v_mul_u32_u24 v{vT3}, 1152, v{vT3}")
    P(f"v_lshl_add_u32 v{dst}, v{vT4}, 4, v{vT3}")
    P(f"v_mov_b32 v{vT4}, 0x7ff00000")
    P(f"v_cmp_le_u32 vcc, 72, v{vT2}")
    P(f"v_cndmask_b32 v{dst}, v{dst}, v{vT4}, vcc")
    P(f"v_cmp_le_u32 vcc, 1184, v{vT0}")
    P(f"v_cndmask_b32 v{dst}, v{dst}, v{vT4}, vcc")

def body(P, NQ, NN, lab):
    def mms(buf): return [mfma(ACC(q, n, NN), FA(buf, n), FB(buf, q), ACC(q, n, NN)) for n in range(NN) for q in range(NQ)]
    def rds(buf, s):
        L = []
        a = [[f"ds_read_b64_tr_b16 {vr(FA(buf,n),2)}, v{vAa} offset:{s*9472 + n*32}", f"ds_read_b64_tr_b16 {vr(FA(buf,n)+2,2)}, v{vAa} offset:{s*9472 + n*32 + 576}"] for n in range(NN)]
        b = [f"ds_read_b128 {vr(FB(buf,q),4)}, v{vBa} offset:{q*2048 + s*1024}" for q in range(NQ)]
        return a[0] + b + sum(a[1:], [])
    for i in range(NQ * NN * 4): P(f"v_mov_b32 v{vAcc+i}, 0")
    for i in range(32): P(f"v_mov_b32 v{FB(1,0)+i}, 0")
    P(f"s_mov_b32 s{sCnt}, 16")
    stamp(P, 1)
    if STAMPS:
        P("s_waitcnt vmcnt(10)")
        stamp(P, 2)
    P(f"{lab}_loop:")
    P("s_waitcnt vmcnt(10)")
    P("s_barrier")
    B = [f"v_add_u32 v{vBa}, s{sR}, v{vBa0}", f"v_add_u32 v{vAa}, s{sR}, v{vAa0}"]
    M = mms(1); f = {}
    spread(f, rds(0, 0), 0, len(M) - 1)
    spread(f, dma(), 0, len(M) - 1)
    B += place(M, f)
    M = mms(0); f = {}
    spread(f, rds(1, 1), 0, len(M) - 2)
    B += place(M, f)
    B += [f"s_add_u32 s{sR}, s{sR}, {OST}", f"s_cmp_ge_u32 s{sR}, {NST*OST}", f"s_cselect_b32 s{sR}, 0, s{sR}",
          f"s_sub_u32 s{sCnt}, s{sCnt}, 1", f"s_cmp_lg_u32 s{sCnt}, 0", "s_waitcnt lgkmcnt(0)"]
    if 'onodma' in EXP: B = [x for x in B if not x.startswith('buffer_load')]
    if 'onomfma' in EXP: B = [x for x in B if not x.startswith('v_mfma')]
    if 'onolds' in EXP: B = [x for x in B if not x.startswith('ds_read')]
    if 'onoa' in EXP: B = [x for x in B if not (x.startswith('buffer_load') and 's[12:15]' in x)]
    if 'onob' in EXP: B = [x for x in B if not (x.startswith('buffer_load') and 's[8:11]' in x)]
    B, _ = insert_lgkm_waits(B)
    P.extend(B)
    P(f"s_cbranch_scc1 {lab}_loop")
    P.extend(mms(1))
    stamp(P, 3)
    P("s_nop 7")
    for q in range(NQ):
        for n in range(NN):
            P(f"s_add_u32 s{sA}, s{sPoff}, {(q*36+n)*4096}")
            P(f"buffer_store_dwordx4 {vr(ACC(q,n,NN),4)}, v{vSt}, s[8:11], s{sA} offen")
    P("s_branch oproj_fin")

def gen_oproj():
    P = Prog()
    P("oproj_kernel:")
    P("s_cmp_ge_u32 s2, 256")
    P("s_cbranch_scc1 oproj_end")
    stamp(P, 0)
    P("s_load_dwordx2 s[4:5], s[0:1], 32")
    P("s_load_dwordx2 s[6:7], s[0:1], 56")
    P("v_lshrrev_b32 v1, 6, v0")
    P(f"v_and_b32 v{vLane}, 63, v0")
    P(f"v_readfirstlane_b32 s{sWave}, v1")
    P(f"s_and_b32 s{sA}, s2, 7")
    P(f"s_lshr_b32 s{sA2}, s2, 3")
    P(f"s_lshr_b32 s{sKQ}, s{sA}, 1")
    P(f"s_and_b32 s{sB}, s{sA}, 1")
    P(f"s_lshl_b32 s{sB}, s{sB}, 3")
    P(f"s_lshr_b32 s{sA}, s{sA2}, 2")
    P(f"s_add_u32 s{sB}, s{sB}, s{sA}")
    P(f"s_and_b32 s{sNQ}, s{sA2}, 3")
    P(f"v_lshlrev_b32 v{vSt}, 4, v{vLane}")
    P(f"v_mov_b32 v{vD}, v{vSt}")
    P(f"v_mov_b32 v{vD+1}, v{vSt}")
    P(f"s_mul_i32 s{sA2}, s{sB}, {9*128}")
    P(f"s_lshl_b32 s{sA}, s{sKQ}, 5")
    P(f"s_add_u32 s{sA2}, s{sA2}, s{sA}")
    for n in range(3):
        P(f"s_add_u32 s{sA}, s{sWave}, {8*n}")
        P(f"s_lshl_b32 s{sLds+n}, s{sA}, 10")
        P(f"s_lshr_b32 s{sOff+n}, s{sA}, 1")
        P(f"s_lshl_b32 s{sOff+n}, s{sOff+n}, 7")
        P(f"s_and_b32 s{sA}, s{sA}, 1")
        P(f"s_add_u32 s{sOff+n}, s{sOff+n}, s{sA}")
        P(f"s_add_u32 s{sOff+n}, s{sOff+n}, s{sA2}")
        P(f"s_lshl_b32 s{sOff+n}, s{sOff+n}, 10")
    P(f"s_mul_i32 s{sOff+3}, s{sKQ}, {1024*1152}")
    P(f"s_mul_i32 s{sA}, s{sNQ}, 288")
    P(f"s_add_u32 s{sOff+3}, s{sOff+3}, s{sA}")
    P(f"s_mov_b32 s{sOff+4}, s{sOff+3}")
    P(f"s_sub_u32 s60, s{sWave}, 2")
    P(f"s_max_i32 s60, s60, 0")
    P(f"s_add_u32 s61, s{sWave}, 6")
    P(f"s_add_u32 s62, s{sWave}, 14")
    P(f"s_cmp_lt_u32 s{sWave}, 5")
    P(f"s_cselect_b32 s62, s62, s61")
    a_voff(P, vD + 2, 60); a_voff(P, vD + 3, 61); a_voff(P, vD + 4, 62)
    for n, s in ((3, 61), (4, 62)):
        P(f"s_lshl_b32 s{sLds+n}, s{s}, 10")
        P(f"s_add_u32 s{sLds+n}, s{sLds+n}, {BSL}")
    P("s_waitcnt lgkmcnt(0)")
    P("s_mov_b32 s8, s6\ns_mov_b32 s9, s7\ns_mov_b32 s10, 0x8000000\ns_mov_b32 s11, 0x20000")
    P("s_mov_b32 s12, s4\ns_mov_b32 s13, s5\ns_mov_b32 s14, 4718592\ns_mov_b32 s15, 0x20000")
    P(f"s_lshl_b32 s{sA}, s60, 10")
    P(f"s_add_u32 s{sA}, s{sA}, {BSL}")
    P(f"s_cmp_lt_u32 s{sWave}, 2")
    P("s_cselect_b32 s16, s8, s12\ns_cselect_b32 s17, s9, s13\ns_cselect_b32 s18, s10, s14\ns_mov_b32 s19, 0x20000")
    P(f"s_cselect_b32 s{sLds+2}, s{sLds+2}, s{sA}")
    P(f"s_cselect_b32 s{sOff+2}, s{sOff+2}, s{sOff+3}")
    P(f"s_mov_b32 s{sA}, 73728")
    P(f"s_cselect_b32 s{sInc2}, 2048, s{sA}")
    P(f"s_cselect_b64 vcc, -1, 0")
    P(f"v_cndmask_b32 v{vD+2}, v{vD+2}, v{vSt}, vcc")
    P(f"s_mov_b32 s{sI}, 0")
    P(f"s_mov_b32 s{sNum}, 0")
    if 'norot' in EXP:
        P(f"s_mov_b32 s{sStg}, 0")
    else:
        P(f"s_lshl_b32 s{sStg}, s{sNQ}, 1")
        P(f"s_add_u32 s{sStg}, s{sStg}, s{sB}")
        P(f"s_lshl_b32 s{sStg}, s{sStg}, 1")
        P(f"s_and_b32 s{sStg}, s{sStg}, 15")
    for i in range(3): P.extend(dma())
    P(f"s_lshr_b32 s{sA2}, s{sWave}, 2")
    P(f"s_mul_i32 s{sQ0}, s{sA2}, 5")
    P(f"s_and_b32 s{sA}, s{sWave}, 3")
    P(f"s_lshl_b32 s{sN0}, s{sA}, 1")
    P(f"s_add_u32 s{sN0}, s{sN0}, 1")
    P(f"s_sub_u32 s{sA2}, 3, s{sA2}")
    P(f"s_cmp_eq_u32 s{sA}, 1")
    P(f"s_cselect_b32 s{sN0}, s{sA2}, s{sN0}")
    P(f"s_cmp_eq_u32 s{sA}, 0")
    P(f"s_cselect_b32 s{sN0}, 0, s{sN0}")
    P(f"s_lshl_b32 s{sA}, s{sQ0}, 11")
    P(f"v_add_u32 v{vBa0}, s{sA}, v{vSt}")
    P(f"v_bfe_u32 v{vT0}, v{vLane}, 2, 3")
    P(f"v_mul_u32_u24 v{vAa0}, 1184, v{vT0}")
    P(f"v_lshrrev_b32 v{vT0}, 5, v{vLane}")
    P(f"v_mul_u32_u24 v{vT0}, 288, v{vT0}")
    P(f"v_add_u32 v{vAa0}, v{vAa0}, v{vT0}")
    P(f"v_and_b32 v{vT0}, 3, v{vLane}")
    P(f"v_lshl_add_u32 v{vAa0}, v{vT0}, 3, v{vAa0}")
    P(f"s_lshl_b32 s{sA}, s{sN0}, 5")
    P(f"s_add_u32 s{sA}, s{sA}, {BSL}")
    P(f"v_add_u32 v{vAa0}, s{sA}, v{vAa0}")
    P(f"s_mul_i32 s{sPoff}, s{sB}, 9")
    P(f"s_add_u32 s{sPoff}, s{sPoff}, s{sQ0}")
    P(f"s_mul_i32 s{sPoff}, s{sPoff}, 36")
    P(f"s_mul_i32 s{sA}, s{sNQ}, 9")
    P(f"s_add_u32 s{sPoff}, s{sPoff}, s{sA}")
    P(f"s_add_u32 s{sPoff}, s{sPoff}, s{sN0}")
    P(f"s_lshl_b32 s{sPoff}, s{sPoff}, 2")
    P(f"s_add_u32 s{sPoff}, s{sPoff}, s{sKQ}")
    P(f"s_lshl_b32 s{sPoff}, s{sPoff}, 10")
    P(f"s_add_u32 s{sPoff}, s{sPoff}, {WS_PART}")
    P(f"s_mov_b32 s{sR}, 0")
    P(f"s_cmp_eq_u32 s{sWave}, 0\ns_cbranch_scc1 op53")
    P(f"s_cmp_eq_u32 s{sWave}, 5\ns_cbranch_scc1 op43")
    P(f"s_cmp_lt_u32 s{sWave}, 4\ns_cbranch_scc1 op52")
    body(P, 4, 2, "op42x")
    P("op53:"); body(P, 5, 3, "op53x")
    P("op43:"); body(P, 4, 3, "op43x")
    P("op52:"); body(P, 5, 2, "op52x")
    P("oproj_fin:")
    stamp_out(P, 5, 65536, sWave, vLane, "oproj_end", "s[8:11]")
    P("oproj_end:")
    P("s_endpgm")
    return P

def gen_red():
    P = Prog()
    P("red_kernel:")
    P("s_cmp_ge_u32 s2, 648")
    P("s_cbranch_scc1 red_end")
    stamp(P, 0)
    P("s_load_dwordx2 s[4:5], s[0:1], 40")
    P("s_load_dwordx2 s[6:7], s[0:1], 56")
    P("v_lshrrev_b32 v1, 6, v0")
    P("v_and_b32 v2, 63, v0")
    P("v_readfirstlane_b32 s20, v1")
    P("s_lshl_b32 s21, s2, 2")
    P("s_add_u32 s21, s21, s20")
    P("v_lshlrev_b32 v3, 4, v2")
    P("s_lshl_b32 s22, s21, 13")
    P(f"s_add_u32 s22, s22, {WS_PART}")
    P("s_add_u32 s23, s22, 4096")
    P("s_mul_i32 s24, s21, 3641")
    P("s_lshr_b32 s24, s24, 16")
    P("s_mul_i32 s25, s24, 18")
    P("s_sub_u32 s25, s21, s25")
    P(f"s_mul_i32 s26, s24, {16*1152}")
    P("s_lshl_b32 s25, s25, 6")
    P("s_add_u32 s26, s26, s25")
    P("v_and_b32 v4, 15, v2")
    P("v_mul_u32_u24 v4, 1152, v4")
    P("v_lshrrev_b32 v5, 4, v2")
    P("v_lshl_add_u32 v4, v5, 4, v4")
    P("s_waitcnt lgkmcnt(0)")
    P("s_mov_b32 s8, s6\ns_mov_b32 s9, s7\ns_mov_b32 s10, 0x8000000\ns_mov_b32 s11, 0x20000")
    P("s_mov_b32 s12, s4\ns_mov_b32 s13, s5\ns_mov_b32 s14, 2654208\ns_mov_b32 s15, 0x20000")
    for i in range(4): P(f"buffer_load_dwordx4 v[{8+4*i}:{11+4*i}], v3, s[8:11], s22 offen offset:{i*1024}")
    for i in range(4): P(f"buffer_load_dwordx4 v[{24+4*i}:{27+4*i}], v3, s[8:11], s23 offen offset:{i*1024}")
    for base, w in ((8, 4), (24, 0)):
        P(f"s_waitcnt vmcnt({w})")
        for r in range(4):
            P(f"v_add_f32 v{base+r}, v{base+r}, v{base+4+r}")
            P(f"v_add_f32 v{base+8+r}, v{base+8+r}, v{base+12+r}")
        for r in range(4):
            P(f"v_add_f32 v{base+r}, v{base+r}, v{base+8+r}")
    P("v_cvt_pk_bf16_f32 v40, v8, v9")
    P("v_cvt_pk_bf16_f32 v41, v10, v11")
    P("v_cvt_pk_bf16_f32 v42, v24, v25")
    P("v_cvt_pk_bf16_f32 v43, v26, v27")
    P("v_permlane32_swap_b32 v40, v42")
    P("v_permlane32_swap_b32 v41, v43")
    P("v_permlane16_swap_b32 v40, v42")
    P("v_permlane16_swap_b32 v41, v43")
    P("buffer_store_dwordx4 v[40:43], v4, s[12:15], s26 offen")
    stamp_out(P, 2, 131072, 20, 2, "red_end", "s[8:11]")
    P("red_end:")
    P("s_endpgm")
    return P

def build():
    assert all((x * 3641) >> 16 == x // 18 for x in range(2592)) or True
    return [("oproj_kernel", gen_oproj(), 144, (256, 512, NST * OST)), ("red_kernel", gen_red(), 48, (648, 256, 0))]
```

```python
import sys, math, struct
from asmgen import *

def f2u(x): return struct.unpack('<I', struct.pack('<f', x))[0]

STAMPS = '--stamps' in sys.argv
EXP = [a[2:] for a in sys.argv if a.startswith('-X')]
def opt(name, default):
    for e in EXP:
        if e.startswith(name + '='): return int(e.split('=')[1])
    return default
NT_FLAG = "nt"
SF = 'nt' if 'snt' in EXP else ('sc1' if 'ssc1' in EXP else '')
TF = 'nt' if 'tnt' in EXP else ''

LDS = 81920
BLK = 8448
NSLOT = 9
RING = NSLOT * BLK
XSLOT = 18432
WSLOT = BLK
XBASE = LDS - 2 * XSLOT - 3 * WSLOT
WBASE = XBASE + 2 * XSLOT
QX = RING
WS_O = 0
WS_PART = 32 << 20
WS_STAMP = 64 << 20
WS_FLAG = 60 << 20
OOB = 0x10000000
QSCALE = math.log2(math.e) / math.sqrt(128.0)
THR = 3e38 if 'bigthr' in EXP else 256.0
TD = opt('td', 3)

vO = 0; vQ = 96; vKV = 144; vS = 176; vP = 200; vPb = 208; vNM = 220; vL = 232
vPS = 235; vPS2 = 236; vKa = 237; vVa = 238; vKa0 = 239; vVa0 = 240; vDma = 241
vWa0 = 242; vXa00 = 243; vXa01 = 244; vWa = 245; vXa = 246; vXd0 = 247; vXd1 = 248; vWd = 249; vLane = 250; vT0 = 251; vT1 = 252; vT2 = 253; vT3 = 254; vOst = 255
vXe = 200; vTx = 201; vTw = 202; vDum = 176
def vr(a, n=1): return f"v{a}" if n == 1 else f"v[{a}:{a+n-1}]"
def O(t, d): return vO + t * 32 + d * 4
def Q(t, c): return vQ + t * 16 + c * 4
def KV(j): return vKV + j * 4
def S(t, kt): return vS + t * 8 + kt * 4
def Pb(t): return vPb + t * 4
def NM(t): return vNM + t * 4
def BB(buf, t): return vQ + buf * 12 + t * 4

MF = "v_mfma_f32_16x16x32_bf16"
def mfma(d, a, b, c): return f"{MF} {vr(d,4)}, {vr(a,4)}, {vr(b,4)}, {vr(c,4) if c is not None else 0}"

sWave=30; sB=31; sHead=32; sAB=33; sXdel=34; sQuad=35; sT0=36; sKVoff=37; sKVm0=38; sISlot=39; sRK=40; sCnt=41; sThr=42; sFloor=43
sA=44; sA2=45; sWoff=46; sXoff=47; sWI=48; sWR=49; sXI=50; sXR=51; sRV=52; sXm0=53; sTx=54; sTw=55; sScale=56; sLi=58; sXend=59
sWm=82
sOoff=92; sIdx=93; sQb=98; sLoc=99; sXcc=100; sRec=101
sSt=60

def stamp(P, i):
    if STAMPS:
        P(f"s_memrealtime s[{sSt+2*i}:{sSt+2*i+1}]")
        if i: P("s_waitcnt lgkmcnt(0)")

def PS(t): return [vPS, 242, 243][t]
def sm_list(t, lab):
    ps = PS(t)
    E = [f"v_exp_f32 {vr(vP+i)}, {vr(S(t,0)+i)}" for i in range(8)]
    out = [E[0], E[1], E[2], E[3]]
    out.append(f"v_add_f32 {vr(ps)}, {vr(vP)}, {vr(vP+1)}")
    out.append(f"v_add_f32 {vr(vPS2)}, {vr(vP+2)}, {vr(vP+3)}")
    out.append(f"v_cvt_pk_bf16_f32 {vr(Pb(t))}, {vr(vP)}, {vr(vP+1)}")
    out.append(f"v_cvt_pk_bf16_f32 {vr(Pb(t)+1)}, {vr(vP+2)}, {vr(vP+3)}")
    out += [E[4], E[5]]
    out.append(f"v_add_f32 {vr(ps)}, {vr(ps)}, {vr(vPS2)}")
    out += [E[6]]
    out.append(f"v_add_f32 {vr(vPS2)}, {vr(vP+4)}, {vr(vP+5)}")
    out += [E[7]]
    out.append(f"v_add_f32 {vr(ps)}, {vr(ps)}, {vr(vP+6)}")
    out.append(f"v_add_f32 {vr(vPS2)}, {vr(vPS2)}, {vr(vP+7)}")
    out.append(f"v_cvt_pk_bf16_f32 {vr(Pb(t)+2)}, {vr(vP+4)}, {vr(vP+5)}")
    out.append(f"v_add_f32 {vr(ps)}, {vr(ps)}, {vr(vPS2)}")
    out.append(f"v_cvt_pk_bf16_f32 {vr(Pb(t)+3)}, {vr(vP+6)}, {vr(vP+7)}")
    out.append(f"v_cmp_nge_f32 vcc, s{sThr}, {vr(ps)}")
    return out
def sm_tail(t, lab):
    return [f"s_cbranch_vccnz {lab}_rare{t}", f"{lab}_back{t}:", f"v_add_f32 {vr(vL+t)}, {vr(vL+t)}, {vr(PS(t))}"]

def cost(s):
    if s.endswith(':'): return 0
    if s.startswith('v_exp') : return 8
    return 4

def rare_path(P, t, lab, last):
    P(f"{lab}_rare{t}:")
    P("s_nop 7")
    s = S(t, 0)
    P(f"v_max3_f32 v{vT0}, v{s}, v{s+1}, v{s+2}")
    P(f"v_max3_f32 v{vT0}, v{vT0}, v{s+3}, v{s+4}")
    P(f"v_max3_f32 v{vT0}, v{vT0}, v{s+5}, v{s+6}")
    P(f"v_max_f32 v{vT0}, v{vT0}, v{s+7}")
    P(f"v_mov_b32 v{vT1}, v{vT0}")
    P(f"v_permlane32_swap_b32 v{vT0}, v{vT1}")
    P(f"v_max_f32 v{vT0}, v{vT0}, v{vT1}")
    P(f"v_mov_b32 v{vT1}, v{vT0}")
    P(f"v_permlane16_swap_b32 v{vT0}, v{vT1}")
    P(f"v_max_f32 v{vT0}, v{vT0}, v{vT1}")
    P(f"v_max_f32 v{vT0}, s{sFloor}, v{vT0}")
    P(f"v_max_f32 v{vT1}, 0, v{vT0}")
    P(f"v_exp_f32_e64 v{vT1}, -v{vT1}")
    for i in range(4): P(f"v_sub_f32 v{NM(t)+i}, v{NM(t)+i}, v{vT0}")
    P(f"v_mul_f32 v{vL+t}, v{vL+t}, v{vT1}")
    for i in range(32): P(f"v_mul_f32 v{O(t,0)+i}, v{O(t,0)+i}, v{vT1}")
    for i in range(8): P(f"v_sub_f32 v{s+i}, v{s+i}, v{vT0}")
    for i in range(8): P(f"v_exp_f32 v{s+i}, v{s+i}")
    P(f"v_add_f32 v{PS(t)}, v{s}, v{s+1}")
    for i in range(2, 8): P(f"v_add_f32 v{PS(t)}, v{PS(t)}, v{s+i}")
    for i in range(4): P(f"v_cvt_pk_bf16_f32 v{Pb(t)+i}, v{s+2*i}, v{s+2*i+1}")
    if last:
        P(f"s_mov_b32 s{sThr}, {hex(f2u(THR))}")
        P(f"s_mov_b32 s{sFloor}, 0")
    P("s_nop 1")
    P(f"s_branch {lab}_back{t}")

def kv_dma(soff, slot, n):
    L = []
    for jj in range(n):
        if jj == 0: L.append(f"s_add_u32 m0, {slot}, s{sKVm0}")
        else: L.append(f"s_add_u32 m0, m0, 800")
        L.append(f"buffer_load_dwordx4 v{vDma}, s[16:19], s{soff} offen offset:{jj*256} {NT_FLAG} lds")
    return L

def place(M, fills):
    out = []
    for i, m in enumerate(M):
        out.append(m)
        out.extend(fills.get(i, []))
    return out

def spread(fills, lst, i0, i1):
    n = i1 - i0 + 1
    k = 0
    for i in range(n):
        tgt = round((i + 1) * len(lst) / n)
        fills.setdefault(i0 + i, []).extend(lst[k:tgt]); k = tgt

def spread_cost(fills, lst, i0, i1):
    gaps = list(range(i0, i1 + 1))
    exist = [sum(cost(x) for x in fills.get(g, [])) for g in gaps]
    total = sum(cost(x) for x in lst) + sum(exist)
    per = total / len(gaps)
    k = 0; acc = 0.0
    for gi, g in enumerate(gaps):
        acc += per - exist[gi]
        while k < len(lst) and (gi == len(gaps) - 1 or acc - cost(lst[k]) / 2 >= 0):
            fills.setdefault(g, []).append(lst[k]); acc -= cost(lst[k]); k += 1
            while k < len(lst) and lst[k].endswith(':'):
                fills[g].append(lst[k]); k += 1

def qk(t): return [mfma(S(t, j // 4), KV(j), Q(t, j % 4), NM(t) if j % 4 == 0 else S(t, j // 4)) for j in range(8)]
def pv(t): return [mfma(O(t, j), KV(j), Pb(t), O(t, j)) for j in range(8)]
def kread(j): return f"ds_read_b128 {vr(KV(j),4)}, v{vKa} offset:{(j//4)*512 + (j%4)*64}"
def vread(j): return [f"ds_read_b64_tr_b16 {vr(KV(j),2)}, v{vVa} offset:{j*32}", f"ds_read_b64_tr_b16 {vr(KV(j)+2,2)}, v{vVa} offset:{j*32+512}"]

def w_dma():
    L = []
    L.append(f"s_add_u32 m0, s{sWI}, s{sWm}")
    L.append(f"s_add_u32 s{sA2}, s{sWoff}, 8192")
    L.append(f"buffer_load_dwordx4 v{vWd}, s[12:15], s{sWoff} offen {SF} lds")
    L.append(f"s_add_u32 m0, m0, 1056")
    L.append(f"s_add_u32 s{sWoff}, s{sWoff}, {32*8192}")
    L.append(f"buffer_load_dwordx4 v{vWd}, s[12:15], s{sA2} offen {SF} lds")
    L.append(f"s_add_u32 s{sWI}, s{sWI}, {WSLOT}")
    L.append(f"s_cmp_ge_u32 s{sWI}, {3*WSLOT}")
    L.append(f"s_cselect_b32 s{sWI}, 0, s{sWI}")
    return L

def x_dma():
    L = []
    L.append(f"s_add_u32 s{sA}, s{sXI}, s{sXm0}")
    for n in range(4):
        L.append(f"s_add_u32 m0, s{sA}, {n*4096}")
        L.append(f"s_add_u32 s{sA2}, s{sXoff}, {n*4*9216}")
        L.append(f"buffer_load_dwordx4 v{vXd0}, s[8:11], s{sA2} offen {SF} lds")
    L.append(f"s_add_u32 m0, s{sA}, s{sWm+1}")
    L.append(f"s_add_u32 s{sA2}, s{sXoff}, s{sWm+2}")
    L.append(f"buffer_load_dwordx4 v{vXd0}, s[8:11], s{sA2} offen {SF} lds")
    L.append(f"s_add_u32 s{sXoff}, s{sXoff}, 128")
    L.append(f"s_sub_u32 s{sXI}, {XSLOT}, s{sXI}")
    return L

def kv0_dma():
    L = []
    for jj in range(4):
        L.append(f"s_add_u32 m0, s{sTx}, {jj*800}")
        L.append("s_nop 0")
        L.append(f"buffer_load_dwordx4 v{vDma}, s[24:27], s{sTw} offen offset:{jj*256} {NT_FLAG} lds")
    return L

def flag_set(P, offreg, lab):
    P(f"s_add_u32 s{offreg}, s{offreg}, s{sRec}")
    P(f"v_mov_b32 v{vT0}, 1")
    P("s_mov_b64 exec, 1")
    P(f"s_cmp_eq_u32 s{sLoc}, 32")
    P(f"s_cbranch_scc1 {lab}_l")
    P(f"buffer_store_byte v{vT0}, off, s[20:23], s{offreg} sc1")
    P(f"s_branch {lab}_e")
    P(f"{lab}_l:")
    P(f"buffer_store_byte v{vT0}, off, s[20:23], s{offreg}")
    P(f"{lab}_e:")
    P("s_mov_b64 exec, -1")

def reg_load(r): return f"buffer_load_dwordx2 {vr(r,2)}, off, s[88:91], s{sQuad} sc1"
def reg_eval(P, r, lab):
    P(f"{lab}:")
    P(f"v_readfirstlane_b32 s{sA}, v{r}")
    P(f"v_readfirstlane_b32 s{sA+1}, v{r+1}")
    P(f"s_add_u32 s{sLoc}, s{sA}, s{sA+1}")
    P(f"s_mul_i32 s{sLoc}, s{sLoc}, 0x01010101")
    P(f"s_lshr_b32 s{sLoc}, s{sLoc}, 24")
    P(f"s_cmp_eq_u32 s{sLoc}, 32")
    P(f"s_cbranch_scc1 {lab}_ok")
    P("s_sleep 16")
    P(reg_load(r))
    P("s_waitcnt vmcnt(0)")
    P(f"s_branch {lab}")
    P(f"{lab}_ok:")
    P(f"s_lshr_b64 s[{sA}:{sA+1}], s[{sA}:{sA+1}], s{sXcc}")
    P(f"s_and_b32 s{sLoc}, s{sA}, 0xff")
    if 'forcesc1' in EXP: P(f"s_mov_b32 s{sLoc}, 0")

def fin_q(P, pairs):
    for (q, a, b) in pairs:
        for r in (a, a + 2, b, b + 2): P(f"v_pk_mul_f32 {vr(r,2)}, {vr(r,2)}, s[{sScale}:{sScale+1}]")
    for (q, a, b) in pairs:
        P(f"v_cvt_pk_bf16_f32 v{q}, v{a}, v{a+1}")
        P(f"v_cvt_pk_bf16_f32 v{q+1}, v{a+2}, v{a+3}")
        P(f"v_cvt_pk_bf16_f32 v{q+2}, v{b}, v{b+1}")
        P(f"v_cvt_pk_bf16_f32 v{q+3}, v{b+2}, v{b+3}")
    for (q, a, b) in pairs:
        P(f"v_permlane32_swap_b32 v{q}, v{q+2}")
        P(f"v_permlane32_swap_b32 v{q+1}, v{q+3}")
    for (q, a, b) in pairs:
        P(f"v_permlane16_swap_b32 v{q}, v{q+2}")
        P(f"v_permlane16_swap_b32 v{q+1}, v{q+3}")


FUSE = 'nofuse' not in EXP
OSL = 20480
oACC = 0; oFA = 84; oFB = 120; oD = 216; oAa = 221; oAa2 = 222; oOut = 223
def ACC(i): return oACC + 4 * i
def FA(n): return oFA + 4 * n
def FB(buf, t, c): return oFB + buf * 48 + (t * 4 + c) * 4
vPoll = 224
sKQ = 34; sWo = 37; sLd = 46; sMask = 40; sHf = 51; sP = 52; sOb = 82; sRdy = 53; sPart = 54; sOutb = 55; sRed = 58; sSt2 = 59

def head_of(P, dst, preg):
    return [f"s_add_u32 s{dst}, s{sIdx}, s{preg}", f"s_and_b32 s{dst}, s{dst}, 3", f"s_and_b32 s{sA2}, s{preg}, 4",
            f"s_add_u32 s{dst}, s{dst}, s{sA2}"]

def wo_dma(slot):
    L = [f"s_lshr_b32 s{sWo}, s{sSt2}, 1"] + head_of(None, sA, sWo)
    L += [f"s_lshl_b32 s{sA}, s{sA}, 1", f"s_and_b32 s{sA2}, s{sSt2}, 1", f"s_add_u32 s{sA}, s{sA}, s{sA2}",
          f"s_mul_i32 s{sA}, s{sA}, {64*1152}", f"s_add_u32 s{sA}, s{sA}, s{sKQ}",
          f"s_cmp_ge_u32 s{sSt2}, 16", f"s_cselect_b32 s{sWo}, {hex(OOB)}, s{sA}", f"s_add_u32 s{sSt2}, s{sSt2}, 1"]
    for n in range(5):
        L.append(f"s_add_u32 m0, s{sLd+n}, {slot*OSL}")
        L.append("s_nop 0")
        L.append(f"buffer_load_dwordx4 v{oD+n}, s[12:15], s{sWo} offen lds")
    return L

def a_voff(P, dst, sidx):
    T0, T1, T2, T3, T4 = vP, vP + 1, vP + 2, vP + 3, vP + 4
    P(f"s_lshl_b32 s{sA}, s{sidx}, 6")
    P(f"v_add_u32 v{T0}, s{sA}, v{vLane}")
    P(f"v_cmp_le_u32 vcc, 592, v{T0}")
    P(f"v_cndmask_b32 v{T1}, 0, 1, vcc")
    P(f"v_mul_u32_u24 v{T2}, 592, v{T1}")
    P(f"v_sub_u32 v{T2}, v{T0}, v{T2}")
    P(f"v_mul_u32_u24 v{T3}, 886, v{T2}")
    P(f"v_lshrrev_b32 v{T3}, 16, v{T3}")
    P(f"v_mul_u32_u24 v{T4}, 74, v{T3}")
    P(f"v_sub_u32 v{T2}, v{T2}, v{T4}")
    P(f"v_lshl_add_u32 v{T3}, v{T1}, 5, v{T3}")
    P(f"v_mul_u32_u24 v{T4}, 3641, v{T2}")
    P(f"v_lshrrev_b32 v{T4}, 16, v{T4}")
    P(f"v_lshl_add_u32 v{T3}, v{T4}, 3, v{T3}")
    P(f"v_mul_u32_u24 v{T4}, 18, v{T4}")
    P(f"v_sub_u32 v{T4}, v{T2}, v{T4}")
    P(f"v_mul_u32_u24 v{T3}, 1152, v{T3}")
    P(f"v_lshl_add_u32 v{dst}, v{T4}, 4, v{T3}")
    P(f"v_mov_b32 v{T4}, 0x7ff00000")
    P(f"v_cmp_le_u32 vcc, 72, v{T2}")
    P(f"v_cndmask_b32 v{dst}, v{dst}, v{T4}, vcc")
    P(f"v_cmp_le_u32 vcc, 1184, v{T0}")
    P(f"v_cndmask_b32 v{dst}, v{dst}, v{T4}, vcc")

def op_setup(P):
    P("s_load_dwordx4 s[4:7], s[0:1], 32")
    for n in range(5):
        if n < 4: P(f"s_add_u32 s{sMask}, s{sWave}, {4*n}")
        else:
            P(f"s_add_u32 s{sMask}, s{sWave}, 16")
            P(f"s_min_u32 s{sMask}, s{sMask}, 18")
        P(f"s_lshl_b32 s{sLd+n}, s{sMask}, 10")
        a_voff(P, oD + n, sMask)
    P(f"s_lshr_b32 s{sA}, s{sHead}, 3")
    P(f"s_mul_i32 s{sKQ}, s{sA}, {1024*1152}")
    P(f"s_mul_i32 s{sA2}, s{sIdx}, 288")
    P(f"s_add_u32 s{sKQ}, s{sKQ}, s{sA2}")
    P(f"s_mov_b32 s{sSt2}, 0")
    P("s_waitcnt lgkmcnt(0)")
    P("s_mov_b32 s12, s4\ns_mov_b32 s13, s5\ns_mov_b32 s14, 4718592\ns_mov_b32 s15, 0x20000")
    P("s_mov_b32 s8, s6\ns_mov_b32 s9, s7\ns_mov_b32 s10, 2654208\ns_mov_b32 s11, 0x20000")

def poll(P, addr, wide, check, lab):
    P(f"{lab}:")
    if wide: P(f"buffer_load_dwordx2 {vr(vPoll,2)}, off, s[20:23], s{addr} sc1")
    else: P(f"buffer_load_dword v{vPoll}, off, s[20:23], s{addr} sc1")
    P("s_waitcnt vmcnt(0)")
    P(f"v_readfirstlane_b32 s{sMask}, v{vPoll}")
    if wide: P(f"v_readfirstlane_b32 s{sMask+1}, v{vPoll+1}")
    P.extend(check)
    P(f"s_cbranch_scc1 {lab}_ok")
    P(f"s_sleep {opt('slp', 8)}")
    P(f"s_branch {lab}")
    P(f"{lab}_ok:")

def oproj(P, first):
    lab = 'op_w0' if first else 'op_wx'
    if first: tiles = [(q, n) for n in range(7) for q in range(3)]
    else: tiles = [(q, n) for n in range(9) for q in ([0, 1, 2] if n >= 7 else [0, 1])]
    NN = 7 if first else 9
    H1 = list(range(0, 4 if first else 5)); H2 = list(range(len(H1), NN))
    def mms(ns, buf, c): return [mfma(ACC(i), FA(n), FB(buf, q, c), ACC(i)) for n in ns for i, (q, nn) in enumerate(tiles) if nn == n]
    def rds(ns, slot, cc):
        L = []
        for n in ns:
            off = slot * OSL + cc * 9472 + n * 32
            reg = oAa
            if off + 576 > 65535: off -= 40960; reg = oAa2
            L += [f"ds_read_b64_tr_b16 {vr(FA(n),2)}, v{reg} offset:{off}", f"ds_read_b64_tr_b16 {vr(FA(n)+2,2)}, v{reg} offset:{off+576}"]
        return L
    def oloads(buf):
        L = head_of(None, sA, sP) + [f"s_lshl_b32 s{sA}, s{sA}, 12"]
        for t in range(3):
            L.append(f"s_add_u32 s{sA2}, s{sA}, s{sOb+t}")
            for c in range(4): L.append(f"buffer_load_dwordx4 {vr(FB(buf,t,c),4)}, v{vT3}, s[20:23], s{sA2} offen offset:{c*1024} sc1")
        return L
    def chk(): return head_of(None, sA, sP) + [f"s_lshl_b32 s{sA}, s{sA}, 3", f"s_bitcmp1_b64 s[{sMask}:{sMask+1}], s{sA}"]
    P(f"{lab}:")
    P(f"s_setprio {opt('pop', 0)}")
    P(f"s_lshr_b32 s{sRed}, s{sHead}, 3")
    P(f"s_mul_i32 s{sA}, s{sB}, 9")
    P(f"s_add_u32 s{sA2}, s{sA}, s{sT0}")
    P(f"s_lshl_b32 s{sOb}, s{sA2}, 17")
    P(f"s_lshl_b32 s{sA2}, s{sRed}, 15")
    P(f"s_add_u32 s{sOb}, s{sOb}, s{sA2}")
    P(f"s_add_u32 s{sOb+1}, s{sOb}, {1<<17}")
    if first: P(f"s_add_u32 s{sOb+2}, s{sOb}, {2<<17}")
    else:
        P(f"s_add_u32 s{sA}, s{sA}, s{sWave}")
        P(f"s_sub_u32 s{sA}, s{sA}, 1")
        P(f"s_lshl_b32 s{sOb+2}, s{sA}, 17")
        P(f"s_add_u32 s{sOb+2}, s{sOb+2}, s{sA2}")
    P(f"v_bfe_u32 v{vT0}, v{vLane}, 2, 3")
    P(f"v_mul_u32_u24 v{oAa}, 1184, v{vT0}")
    P(f"v_lshrrev_b32 v{vT0}, 5, v{vLane}")
    P(f"v_mul_u32_u24 v{vT0}, 288, v{vT0}")
    P(f"v_add_u32 v{oAa}, v{oAa}, v{vT0}")
    P(f"v_and_b32 v{vT0}, 3, v{vLane}")
    P(f"v_lshl_add_u32 v{oAa}, v{vT0}, 3, v{oAa}")
    P(f"v_add_u32 v{oAa2}, 40960, v{oAa}")
    P(f"v_and_b32 v{vT0}, 15, v{vLane}")
    P(f"v_mul_u32_u24 v{oOut}, 1152, v{vT0}")
    P(f"v_lshrrev_b32 v{vT0}, 4, v{vLane}")
    P(f"v_lshl_add_u32 v{oOut}, v{vT0}, 3, v{oOut}")
    for i in range(0, 84, 2): P(f"v_mov_b64 {vr(oACC+i,2)}, 0")
    for i in range(0, 36, 2): P(f"v_mov_b64 {vr(oFA+i,2)}, 0")
    for t in range(3):
        for i in range(0, 4, 2): P(f"v_mov_b64 {vr(FB(1,t,3)+i,2)}, 0")
    P(f"s_mov_b32 s{sP}, 0")
    P(f"s_mov_b64 s[{sMask}:{sMask+1}], 0")
    P(f"s_lshl_b32 s{sHf}, s{sRed}, 3")
    P(f"s_add_u32 s{sHf}, s{sHf}, s{sRec}")
    P.extend(oloads(0))
    P("s_waitcnt vmcnt(0)")
    P(f"s_mov_b32 s{sP}, 1")
    P(f"{lab}_loop:")
    for hb in range(2):
        for half in range(2):
            slot = hb * 2 + half
            if half == 0:
                P("s_waitcnt vmcnt(5)")
            else:
                P(f"s_cmp_lg_u32 s{sRdy}, 0")
                P(f"s_cbranch_scc1 {lab}_w{slot}")
                P("s_waitcnt vmcnt(10)")
                P(f"{lab}_w{slot}:")
                P("s_waitcnt vmcnt(22)")
            P("s_barrier")
            c0 = half * 2
            pb, pc = (hb, 1) if half == 1 else (1 - hb, 3)
            B = []
            M = mms(H2, pb, pc); f = {}
            spread(f, rds(H1, slot, 0), 0, len(M) - 3)
            spread(f, wo_dma((slot + 3) % 4), 0, len(M) - 1)
            B += place(M, f)
            B, pend = insert_lgkm_waits(B, group=2)
            P.extend(B)
            if half == 0:
                P(f"s_mov_b32 s{sRdy}, 0")
                P(f"s_cmp_ge_u32 s{sP}, 8")
                P(f"s_cbranch_scc1 {lab}_n{slot}")
                P.extend(chk())
                P(f"s_cbranch_scc0 {lab}_n{slot}")
                P.extend(oloads(1 - hb))
                P(f"s_mov_b32 s{sRdy}, 1")
                P(f"{lab}_n{slot}:")
            B = []
            for (ns, c, rn, rc) in ((H1, c0, H2, 0), (H2, c0, H1, 1), (H1, c0 + 1, H2, 1)):
                M = mms(ns, hb, c); f = {}
                spread(f, rds(rn, slot, rc), 0, max(0, len(M) - 4))
                B += place(M, f)
            B.append("s_waitcnt lgkmcnt(0)")
            B, _ = insert_lgkm_waits(B, pending=pend, group=2)
            P.extend(B)
            if half == 1:
                P(f"s_cmp_lg_u32 s{sRdy}, 0")
                P(f"s_cbranch_scc1 {lab}_r{slot}")
                P(f"s_cmp_ge_u32 s{sP}, 8")
                P(f"s_cbranch_scc1 {lab}_r{slot}")
                poll(P, sHf, True, chk(), f"{lab}_p{slot}")
                P.extend(oloads(1 - hb))
                P("s_waitcnt vmcnt(0)")
                P(f"{lab}_r{slot}:")
                P(f"s_add_u32 s{sP}, s{sP}, 1")
                if STAMPS and hb == 1:
                    l2 = P.newlabel(lab + "_st")
                    P(f"s_cmp_lg_u32 s{sP}, 5")
                    P(f"s_cbranch_scc1 {l2}")
                    stamp(P, 5)
                    P(f"{l2}:")
    P(f"s_cmp_lt_u32 s{sP}, 9")
    P(f"s_cbranch_scc1 {lab}_loop")
    P.extend(mms(H2, 1, 3))
    stamp(P, 6)
    P(f"s_lshl_b32 s{sA}, s{sB}, 2")
    P(f"s_add_u32 s{sA}, s{sA}, s{sIdx}")
    P(f"s_lshl_b32 s{sWo}, s{sIdx}, 2")
    P(f"s_add_u32 s{sWo}, s{sWo}, 128")
    P(f"s_add_u32 s{sHf}, s{sWo}, s{sRec}")
    P(f"s_mul_i32 s{sPart}, s{sA}, {64*6*1024}")
    P(f"s_mul_i32 s{sA}, s{sWave}, {6*1024}")
    P(f"s_add_u32 s{sPart}, s{sPart}, s{sA}")
    P(f"s_add_u32 s{sPart}, s{sPart}, {WS_PART}")
    P(f"s_mul_i32 s{sOutb}, s{sB}, 165888")
    P(f"s_mul_i32 s{sA}, s{sIdx}, 288")
    P(f"s_add_u32 s{sOutb}, s{sOutb}, s{sA}")
    P(f"s_mul_i32 s{sOb}, s{sT0}, 18432")
    P(f"s_add_u32 s{sOb}, s{sOb}, s{sOutb}")
    P(f"s_add_u32 s{sOb+1}, s{sOb}, 18432")
    if first: P(f"s_add_u32 s{sOb+2}, s{sOb}, {2*18432}")
    else:
        P(f"s_sub_u32 s{sA}, s{sWave}, 1")
        P(f"s_mul_i32 s{sOb+2}, s{sA}, 18432")
        P(f"s_add_u32 s{sOb+2}, s{sOb+2}, s{sOutb}")
    for kq in range(3):
        P(f"s_cmp_eq_u32 s{sRed}, {kq}")
        P(f"s_cbranch_scc1 {lab}_k{kq}")
    for kq in (3, 0, 1, 2):
        P(f"{lab}_k{kq}:")
        P("s_nop 7")
        P(f"s_cmp_eq_u32 s{sLoc}, 32")
        P(f"s_cbranch_scc1 {lab}_pl{kq}")
        for fl in ('sc1', ''):
            for i in range(len(tiles)):
                u, j = i & 3, i >> 2
                if u == kq: continue
                off = ((u * 4 + kq) * 24 + j) * 1024
                P(f"s_add_u32 s{sA}, s{sPart}, {off}")
                P(f"buffer_store_dwordx4 {vr(ACC(i),4)}, v{vT3}, s[20:23], s{sA} offen {fl}")
            if fl:
                P(f"s_branch {lab}_pe{kq}")
                P(f"{lab}_pl{kq}:")
        P(f"{lab}_pe{kq}:")
        P("s_waitcnt vmcnt(0)")
        P("s_barrier")
        if first:
            P(f"s_add_u32 s{sA}, s{sWo}, {kq}")
            flag_set(P, sA, f"{lab}_fr{kq}")
        poll(P, sHf, False, [f"s_cmp_eq_u32 s{sMask}, 0x01010101"], f"{lab}_q{kq}")
        mine = [i for i in range(len(tiles)) if (i & 3) == kq]
        srcs = [k for k in range(4) if k != kq]
        for jj, i in enumerate(mine):
            for si, src in enumerate(srcs):
                off = ((kq * 4 + src) * 24 + (i >> 2)) * 1024
                P(f"s_add_u32 s{sA}, s{sPart}, {off}")
                P(f"buffer_load_dwordx4 {vr(oFB + (jj*3+si)*4, 4)}, v{vT3}, s[20:23], s{sA} offen sc1")
        for jj, i in enumerate(mine):
            P(f"s_waitcnt vmcnt({(len(mine)-1-jj)*3 + jj})")
            r = oFB + jj * 12
            for e in range(4):
                P(f"v_add_f32 v{r+e}, v{r+e}, v{r+4+e}")
                P(f"v_add_f32 v{ACC(i)+e}, v{ACC(i)+e}, v{r+8+e}")
            for e in range(4): P(f"v_add_f32 v{ACC(i)+e}, v{ACC(i)+e}, v{r+e}")
            P(f"v_cvt_pk_bf16_f32 v{r}, v{ACC(i)}, v{ACC(i)+1}")
            P(f"v_cvt_pk_bf16_f32 v{r+1}, v{ACC(i)+2}, v{ACC(i)+3}")
            q, n = tiles[i]
            P(f"buffer_store_dwordx2 {vr(r,2)}, v{oOut}, s[8:11], s{sOb+q} offen offset:{n*32}")
        P("s_branch attn_fin")

def attn_wave(P, role):
    lab = role
    NT = 3 if role == 'w0' else 2
    tl = NT - 1
    loader = role != 'w0'
    ndma = {'w0': 0, 'wk': 8, 'wv': 4}[role]
    def wread(d): return [f"ds_read_b64_tr_b16 {vr(KV(d),2)}, v{vWa} offset:{d*32}", f"ds_read_b64_tr_b16 {vr(KV(d)+2,2)}, v{vWa} offset:{d*32+256}"]
    def xread(buf, t):
        if loader and t == 2: return f"ds_read_b128 {vr(BB(buf,t),4)}, v{vXe}"
        return f"ds_read_b128 {vr(BB(buf,t),4)}, v{vXa} offset:{t*2048}"
    def qmf(d, buf):
        ts = [0, 1, 2] if (not loader or d >= 6) else [0, 1]
        return [mfma(O(t, d), KV(d), BB(buf, t), O(t, d)) for t in ts]
    D1, D2 = (([0, 1, 2], [3, 4, 5]) if not loader else ([0, 1, 2, 3], [4, 5, 6, 7]))
    def qchunk(par, last):
        if last and par == 1:
            l2 = P.newlabel(lab + "_lw")
            P(f"s_cmp_eq_u32 s{sAB}, 0")
            P(f"s_cbranch_scc1 {l2}")
            P("s_waitcnt vmcnt(0)")
            P(f"{l2}:")
            P("s_waitcnt vmcnt(4)")
        else:
            P(f"s_waitcnt vmcnt({2 if par == 0 else 7})")
        P("s_barrier")
        if STAMPS and par == 0 and not last:
            for (cv, si) in (() if FUSE else ((8, 5), (4, 6))):
                l2 = P.newlabel(lab + "_st")
                P(f"s_cmp_lg_u32 s{sCnt}, {cv}")
                P(f"s_cbranch_scc1 {l2}")
                stamp(P, si)
                P(f"{l2}:")
        if last and par == 0:
            P(reg_load(vDum + 6))
            l2 = P.newlabel(lab + "_kv0")
            P(f"s_cmp_lg_u32 s{sAB}, 0")
            P(f"s_cbranch_scc1 {l2}")
            P.extend(kv0_dma())
            P(f"{l2}:")
        body = []
        body.append(f"v_add_u32 v{vWa}, s{sWR}, v{vWa0}")
        body.append(f"v_add_u32 v{vXa}, s{sXR}, v{vXa00 + par}")
        if loader: body.append(f"v_subrev_u32 v{vXe}, s{sXdel}, v{vXa}")
        M1 = sum([qmf(d, 1 - par) for d in D2], [])
        M2 = sum([qmf(d, par) for d in D1], [])
        M = M1 + M2
        fills = {}
        rd = wread(D1[0]) + [xread(par, t) for t in range(3)] + sum([wread(d) for d in D1[1:]], [])
        spread(fills, rd, 0, opt('qf1', 4))
        rd = sum([wread(d) for d in D2], [])
        spread(fills, rd, len(M1), len(M1) + opt('qf2', 3))
        tailS = [f"s_add_u32 s{sWR}, s{sWR}, {WSLOT}", f"s_cmp_ge_u32 s{sWR}, {3*WSLOT}", f"s_cselect_b32 s{sWR}, 0, s{sWR}"]
        if par == 1:
            tailS += [f"s_sub_u32 s{sXR}, {XSLOT}, s{sXR}", f"s_sub_u32 s{sCnt}, s{sCnt}, 1", f"s_cmp_lg_u32 s{sCnt}, 0"]
        dm = [] if last else (w_dma() + (x_dma() if par == 0 else []))
        spread_cost(fills, dm + tailS, 0, len(M) - 1)
        body += place(M, fills)
        body.append("s_waitcnt lgkmcnt(0)")
        if 'qnomfma' in EXP: body = [x for x in body if not x.startswith('v_mfma')]
        if 'qnolds' in EXP: body = [x for x in body if not x.startswith('ds_read')]
        if 'qnodma' in EXP: body = [x for x in body if not x.startswith('buffer_load')]
        body, _ = insert_lgkm_waits(body, group=2)
        P.extend(body)
    P(f"s_mov_b32 s{sCnt}, 8")
    P(f"{lab}_qloop:")
    qchunk(0, False); qchunk(1, False)
    P(f"s_cbranch_scc1 {lab}_qloop")
    qchunk(0, True); qchunk(1, True)
    P("s_barrier")
    stamp(P, 1)
    fin = sum([qmf(d, 1) for d in D2], [])
    dm = []
    if role == 'wk':
        for n in range(3):
            dm += kv_dma(sKVoff, str((2 + 2 * n) * BLK), 8) + [f"s_add_u32 s{sKVoff}, s{sKVoff}, 8192"]
        dm.append(f"s_mov_b32 s{sISlot}, {8*BLK}")
    if role == 'wv':
        for n in range(2):
            dm += kv_dma(sKVoff, str((3 + 2 * n) * BLK), 4) + [f"s_add_u32 s{sKVoff}, s{sKVoff}, 8192"]
        dm.append(f"s_mov_b32 s{sISlot}, {7*BLK}")
    fills = {}
    spread(fills, dm, 0, len(fin) - 1)
    P.extend(place(fin, fills))
    reg_eval(P, vDum + 6, lab + "_rg")
    P("s_nop 7")
    if role == 'wv':
        P(f"s_lshl_b32 s{sA}, s{sAB}, 2")
        P(f"s_add_u32 s{sA}, s{sA}, s{sWave}")
        P(f"s_cmp_lg_u32 s{sA}, 3")
        P(f"s_cbranch_scc1 {lab}_nofl")
        P(f"s_add_u32 s{sA}, s{sQb}, 64")
        flag_set(P, sA, lab + "_fq")
        P(f"{lab}_nofl:")
    if loader:
        fin_q(P, [(Q(2, 3), O(2, 6), O(2, 7))])
        P(f"s_lshl_b32 s{sA}, s{sLi}, 10")
        P(f"v_add_u32 v{vT0}, s{sA}, v{vOst}")
        P(f"ds_write_b128 v{vT0}, {vr(Q(2,3),4)} offset:{QX - 65536}")
        fin_q(P, [(Q(t, c), O(t, 2 * c), O(t, 2 * c + 1)) for t in range(2) for c in range(4)])
    else:
        fin_q(P, [(Q(t, c), O(t, 2 * c), O(t, 2 * c + 1)) for t in range(3) for c in range(3)])
    for t in range(NT):
        for i in range(0, 32, 2): P(f"v_mov_b64 {vr(O(t,0)+i,2)}, 0")
        for i in range(0, 4, 2): P(f"v_mov_b64 {vr(NM(t)+i,2)}, 0")
        P(f"v_mov_b32 v{vL+t}, 0")
    for i in range(0, 4, 2): P(f"v_mov_b64 {vr(Pb(tl)+i,2)}, 0")
    P(f"s_mov_b32 s{sCnt}, 0")
    P(f"s_mov_b32 s{sRK}, 0")
    P(f"s_mov_b32 s{sRV}, {BLK}")
    P(f"s_mov_b32 s{sThr}, {hex(f2u(-1.0))}")
    P(f"s_mov_b32 s{sFloor}, 0xff800000")
    P(f"s_cmp_eq_u32 s{sAB}, 0")
    P(f"s_cbranch_scc1 {lab}_pa")
    P(f"s_setprio {opt('pb2', 1)}")
    P(f"s_branch {lab}_pb")
    P(f"{lab}_pa:")
    P("s_setprio 2")
    P(f"{lab}_pb:")
    if loader: P("s_waitcnt lgkmcnt(0)")
    else: P("s_waitcnt vmcnt(0)")
    P("s_barrier")
    if not loader:
        for t in range(3): P(f"ds_read_b128 {vr(Q(t,3),4)}, v{vOst} offset:{QX - 65536 + t*1024}")
        P("s_waitcnt lgkmcnt(0)")
    stamp(P, 2)
    if STAMPS: P("s_memtime s[78:79]\ns_waitcnt lgkmcnt(0)")
    P(f"{lab}_loop:")
    if role == 'wk': P("s_waitcnt vmcnt(24)")
    if role == 'wv': P("s_waitcnt vmcnt(8)")
    if 'nobar' not in EXP: P("s_barrier")
    body = []
    body.append(f"v_add_u32 v{vKa}, s{sRK}, v{vKa0}")
    M = pv(tl) + sum([qk(t) for t in range(NT)], []) + sum([pv(t) for t in range(NT - 1)], [])
    fills = {}
    for j in range(8): fills.setdefault(j, []).append(kread(j))
    base = 8 + 8 * tl
    for j in range(8): fills.setdefault(base + j, []).extend(vread(j))
    misc = [f"v_add_u32 v{vVa}, s{sRV}, v{vVa0}"]
    if ndma:
        misc += [f"s_cmp_ge_u32 s{sCnt}, {28 if role == 'wk' else 29}", f"s_cselect_b32 s{sA}, {hex(OOB)}, s{sKVoff}"]
        misc += kv_dma(sA, f"s{sISlot}", ndma)
        misc += [f"s_add_u32 s{sKVoff}, s{sKVoff}, 8192", f"s_mov_b32 s{sISlot}, s{sRV if role == 'wk' else sRK}"]
    misc += [f"s_add_u32 s{sRK}, s{sRK}, {2*BLK}",
            f"s_sub_u32 s{sA2}, s{sRK}, {RING}",
            f"s_cmp_ge_u32 s{sRK}, {RING}",
            f"s_cselect_b32 s{sRK}, s{sA2}, s{sRK}",
            f"s_add_u32 s{sRV}, s{sRV}, {2*BLK}",
            f"s_sub_u32 s{sA2}, s{sRV}, {RING}",
            f"s_cmp_ge_u32 s{sRV}, {RING}",
            f"s_cselect_b32 s{sRV}, s{sA2}, s{sRV}",
            f"s_add_u32 s{sCnt}, s{sCnt}, 1"]
    s0 = opt('s0', 16)
    spread_cost(fills, misc, 0, s0 - 1)
    bd = opt('bd', 2)
    if NT == 3:
        e0 = opt('e0', 26); e1 = opt('e1', 36); e2 = 47 - bd
        spread_cost(fills, sm_list(0, lab), s0, e0)
        fills.setdefault(e0 + bd, []).extend(sm_tail(0, lab))
        fills.setdefault(e1 + bd, []).extend(sm_tail(1, lab))
        spread_cost(fills, sm_list(1, lab), e0 + 1, e1)
        spread_cost(fills, sm_list(2, lab), e1 + 1, e2)
        fills.setdefault(47, []).extend(sm_tail(2, lab))
        assert e0 + bd < 32 and e1 + bd < 40
    else:
        spread_cost(fills, sm_list(0, lab), s0, 22)
        fills.setdefault(23, []).extend(sm_tail(0, lab))
        spread_cost(fills, sm_list(1, lab), 24, 30)
        fills.setdefault(31, []).extend(sm_tail(1, lab))
    body += place(M, fills)
    if 'nodma' in EXP: body = [x for x in body if not x.startswith('buffer_load')]
    if 'nosm' in EXP: body = [x for x in body if not (x.startswith('v_exp') or x.startswith('v_add_f32') or x.startswith('v_cvt') or x.startswith('v_cmp') or x.startswith('s_cbranch_vcc'))]
    if 'nobr' in EXP: body = [x for x in body if not (x.startswith('s_cbranch_vcc'))]
    if 'nolds' in EXP: body = [x for x in body if not x.startswith('ds_read')]
    if 'nosalu' in EXP: body = [x for x in body if not (x.startswith('s_') and 's41' not in x and not x.startswith('s_cbranch'))]
    if 'others_idle' in EXP and role != 'w0': body = [x for x in body if 's41' in x or x.endswith(':')]
    TL = 'tl' in EXP and role == 'w0'
    if TL: body.append("s_memrealtime s[94:95]")
    body.append(f"s_cmp_lt_u32 s{sCnt}, 32")
    body.append("s_waitcnt lgkmcnt(0)")
    body, _ = insert_lgkm_waits(body, group=opt('grp', 2))
    P.extend(body)
    if TL:
        P(f"v_mov_b32 v{vT2}, s94")
        P(f"s_lshl_b32 s96, s2, 7")
        P(f"s_lshl_b32 s97, s{sCnt}, 2")
        P(f"s_add_u32 s96, s96, s97")
        P(f"s_add_u32 s96, s96, {WS_STAMP + 0x80000 - 4}")
        P("s_mov_b64 exec, 1")
        P(f"buffer_store_dword v{vT2}, off, s[20:23], s96")
        P("s_mov_b64 exec, -1")
        P(f"s_cmp_lt_u32 s{sCnt}, 32")
    P(f"s_cbranch_scc1 {lab}_loop")
    P.extend(pv(tl))
    stamp(P, 3)
    if STAMPS: P("s_memtime s[80:81]\ns_waitcnt lgkmcnt(0)")
    if FUSE:
        P("s_waitcnt vmcnt(0)")
        P("s_barrier")
        P(f"s_cmp_lg_u32 s{sAB}, 0")
        P(f"s_cbranch_scc1 {lab}_nopf")
        op_setup(P)
        for i in range(3): P.extend(wo_dma(i))
        P(f"{lab}_nopf:")
    for t in range(NT):
        l = vL + t
        P(f"v_mov_b32 v{vT1}, v{l}")
        P(f"v_permlane32_swap_b32 v{l}, v{vT1}")
        P(f"v_add_f32 v{l}, v{l}, v{vT1}")
        P(f"v_mov_b32 v{vT1}, v{l}")
        P(f"v_permlane16_swap_b32 v{l}, v{vT1}")
        P(f"v_add_f32 v{l}, v{l}, v{vT1}")
        P(f"v_rcp_f32 v{l}, v{l}")
    P("s_nop 7")
    for t in range(NT):
        for i in range(32): P(f"v_mul_f32 v{O(t,0)+i}, v{O(t,0)+i}, v{vL+t}")
        for e in range(4):
            q = Q(t, e); a = O(t, 2 * e); b = O(t, 2 * e + 1)
            P(f"v_cvt_pk_bf16_f32 v{q}, v{a}, v{a+1}")
            P(f"v_cvt_pk_bf16_f32 v{q+1}, v{a+2}, v{a+3}")
            P(f"v_cvt_pk_bf16_f32 v{q+2}, v{b}, v{b+1}")
            P(f"v_cvt_pk_bf16_f32 v{q+3}, v{b+2}, v{b+3}")
        if FUSE:
            P(f"s_cmp_eq_u32 s{sLoc}, 32")
            P(f"s_cbranch_scc1 {lab}_os{t}")
            for e in range(4): P(f"buffer_store_dwordx4 {vr(Q(t,e),4)}, v{vT3}, s[20:23], s{sOoff} offen offset:{e*1024} sc1")
            P(f"s_branch {lab}_oe{t}")
            P(f"{lab}_os{t}:")
        for e in range(4): P(f"buffer_store_dwordx4 {vr(Q(t,e),4)}, v{vT3}, s[20:23], s{sOoff} offen offset:{e*1024}")
        P(f"{lab}_oe{t}:")
        if t < NT - 1: P(f"s_add_u32 s{sOoff}, s{sOoff}, {128*1024}")
    if FUSE:
        P("s_waitcnt vmcnt(0)")
        P("s_barrier")
        if role == 'w0':
            P(f"s_mov_b32 s{sA}, s{sHead}")
            flag_set(P, sA, lab + "_fh")
        stamp(P, 4)
        P(f"s_cmp_lg_u32 s{sAB}, 0")
        P(f"s_cbranch_scc1 attn_fin")
        P(f"s_branch {'op_w0' if role == 'w0' else 'op_wx'}")
    else:
        P(f"s_branch attn_fin")
    for t in range(NT): rare_path(P, t, lab, t == tl)

def gen_attn():
    P = Prog()
    P("attn_kernel:")
    P(f"s_cmp_ge_u32 s2, {256 if 'onlyA' in EXP else 512}")
    P("s_cbranch_scc1 attn_end")
    stamp(P, 0)
    P("s_load_dwordx4 s[4:7], s[0:1], 0")
    P("s_load_dwordx4 s[24:27], s[0:1], 16")
    P("s_load_dwordx4 s[88:91], s[0:1], 48")
    P(f"v_lshrrev_b32 v1, 6, v0")
    P(f"v_and_b32 v{vLane}, 63, v0")
    P(f"v_readfirstlane_b32 s{sWave}, v1")
    P(f"s_lshr_b32 s{sAB}, s2, 8")
    P(f"s_cmp_lg_u32 s{sAB}, 0")
    P(f"s_setprio {opt('pb1', 3)}")
    P("s_cbranch_scc1 attn_p0")
    P("s_setprio 3")
    P("attn_p0:")
    P(f"s_and_b32 s{sB}, s2, 7")
    P(f"s_lshl_b32 s{sB}, s{sB}, 1")
    P(f"s_bfe_u32 s{sA}, s2, 0x10007")
    P(f"s_add_u32 s{sB}, s{sB}, s{sA}")
    P(f"s_bfe_u32 s{sA}, s2, 0x20005")
    P(f"s_bfe_u32 s{sIdx}, s2, 0x20003")
    P(f"s_lshl_b32 s{sQuad}, s{sB}, 4")
    P(f"s_lshl_b32 s{sHead}, s{sA}, 1")
    P(f"s_add_u32 s{sHead}, s{sHead}, s{sAB}")
    P(f"s_lshl_b32 s{sHead}, s{sHead}, 2")
    P(f"s_add_u32 s{sHead}, s{sHead}, s{sIdx}")
    P(f"s_bfe_u32 s{sQb}, s2, 0x40003")
    L = vLane
    P(f"v_lshrrev_b32 v{vT0}, 4, v{L}")
    P(f"v_and_b32 v{vT1}, 15, v{L}")
    P(f"v_lshlrev_b32 v{vDma}, 11, v{vT0}")
    P(f"v_lshl_add_u32 v{vDma}, v{vT1}, 4, v{vDma}")
    P(f"v_lshrrev_b32 v{vT2}, 5, v{L}")
    P(f"v_lshlrev_b32 v{vWd}, 17, v{vT2}")
    P(f"v_and_b32 v{vT2}, 1, v{vT0}")
    P(f"v_lshl_add_u32 v{vWd}, v{vT2}, 15, v{vWd}")
    P(f"v_lshl_add_u32 v{vWd}, v{vT1}, 4, v{vWd}")
    P(f"s_sub_u32 s{sLi}, s{sWave}, 1")
    P(f"s_and_b32 s{sA}, s{sWave}, 1")
    P(f"s_lshl_b32 s{sA}, s{sA}, 2")
    P(f"v_add_u32 v{vT2}, s{sA}, v{vT0}")
    P(f"v_and_b32 v{vT3}, 7, v{L}")
    P(f"v_xor_b32 v{vT2}, v{vT2}, v{vT3}")
    P(f"v_lshrrev_b32 v{vT3}, 3, v{L}")
    P(f"v_mul_u32_u24 v{vT3}, 1152, v{vT3}")
    P(f"v_lshl_add_u32 v{vXd0}, v{vT2}, 4, v{vT3}")
    P(f"s_lshl_b32 s{sKVoff}, s{sB}, 5")
    P(f"s_add_u32 s{sKVoff}, s{sKVoff}, s{sHead}")
    P(f"s_lshl_b32 s{sKVoff}, s{sKVoff}, 18")
    P(f"s_lshl_b32 s{sWoff}, s{sHead}, 8")
    P(f"s_mul_i32 s{sXoff}, s{sB}, 165888")
    P("s_waitcnt lgkmcnt(0)")
    P("s_mov_b32 s8, s4\ns_mov_b32 s9, s5\ns_mov_b32 s10, 2654208\ns_mov_b32 s11, 0x20000")
    P("s_mov_b32 s12, s26\ns_mov_b32 s13, s27\ns_mov_b32 s14, 4718592\ns_mov_b32 s15, 0x20000")
    P(f"s_mul_i32 s{sWm}, s{sWave}, {2*1056}")
    P(f"s_add_u32 s{sWm}, s{sWm}, {WBASE}")
    P(f"s_lshr_b32 s{sA}, s{sWave}, 1")
    P(f"s_lshl_b32 s{sA}, s{sA}, 16")
    P(f"s_and_b32 s{sA2}, s{sWave}, 1")
    P(f"s_lshl_b32 s{sA2}, s{sA2}, 14")
    P(f"s_add_u32 s{sA}, s{sA}, s{sA2}")
    P(f"s_mov_b32 s{sXend}, s{sWoff}")
    P(f"s_add_u32 s{sWoff}, s{sWoff}, s{sA}")
    P(f"s_mov_b32 s{sRV}, s{sXoff}")
    P(f"s_mul_i32 s{sA}, s{sWave}, 9216")
    P(f"s_add_u32 s{sXoff}, s{sXoff}, s{sA}")
    P(f"s_lshl_b32 s{sXm0}, s{sWave}, 10")
    P(f"s_add_u32 s{sXm0}, s{sXm0}, {XBASE}")
    P(f"s_cmp_lt_u32 s{sWave}, 2")
    P(f"s_mov_b32 s{sA}, {3*4096}")
    P(f"s_cselect_b32 s{sWm+1}, {4*4096}, s{sA}")
    P(f"s_mov_b32 s{sA}, {12*9216}")
    P(f"s_cselect_b32 s{sWm+2}, {16*9216}, s{sA}")
    P(f"s_mov_b32 s{sWI}, 0")
    P(f"s_mov_b32 s{sXI}, 0")
    P(f"s_cmp_eq_u32 s{sWave}, 2")
    P("s_cselect_b32 s16, s6, s24")
    P("s_cselect_b32 s17, s7, s25")
    P("s_mov_b32 s18, 0x8000000")
    P("s_mov_b32 s19, 0x20000")
    P(f"s_bitcmp1_b32 s{sWave}, 0")
    P("s_cselect_b32 s24, s24, s6")
    P("s_cselect_b32 s25, s25, s7")
    P("s_mov_b32 s26, 0x8000000\ns_mov_b32 s27, 0x20000")
    P(f"s_cselect_b32 s{sTx}, {BLK}, 0")
    P(f"s_lshr_b32 s{sA}, s{sWave}, 1")
    P(f"s_mul_i32 s{sA2}, s{sA}, {4*1056}")
    P(f"s_add_u32 s{sTx}, s{sTx}, s{sA2}")
    P(f"s_lshl_b32 s{sA}, s{sA}, 10")
    P(f"s_add_u32 s{sTw}, s{sKVoff}, s{sA}")
    P("s_mov_b32 s20, s90\ns_mov_b32 s21, s91\ns_mov_b32 s22, 0x8000000\ns_mov_b32 s23, 0x20000")
    P("s_mov_b32 s90, 256\ns_mov_b32 s91, 0x20000")
    P(f"s_lshl_b32 s{sRec}, s{sB}, 8")
    P(f"s_add_u32 s{sRec}, s{sRec}, {WS_FLAG}")
    P(f"s_getreg_b32 s{sXcc}, hwreg(HW_REG_XCC_ID, 0, 4)")
    P(f"s_and_b32 s{sXcc}, s{sXcc}, 7")
    P(f"s_lshl_b32 s{sXcc}, s{sXcc}, 3")
    P(f"s_cmp_eq_u32 s{sAB}, 0")
    P("s_cbranch_scc1 attn_isA")
    P(f"s_lshl_b32 s{sA}, s{sHead}, 2")
    P(f"s_add_u32 s{sA}, s{sA}, s{sWave}")
    P(f"s_cmp_lg_u32 s{sA}, {4*4+3}")
    P("s_cbranch_scc1 attn_nozero")
    P(f"v_mov_b32 v{vDum+4}, 0")
    P(f"v_lshlrev_b32 v{vDum+5}, 2, v{L}")
    P(f"buffer_store_dword v{vDum+4}, v{vDum+5}, s[20:23], s{sRec} offen sc1")
    P("s_waitcnt vmcnt(0)")
    P("attn_nozero:")
    P(f"s_cmp_lg_u32 s{sWave}, 3")
    P("s_cbranch_scc1 attn_noregB")
    P(f"s_lshl_b64 s[{sA}:{sA+1}], 1, s{sXcc}")
    P(f"v_mov_b32 v{vDum+4}, s{sA}")
    P(f"v_mov_b32 v{vDum+5}, s{sA+1}")
    P("s_mov_b64 exec, 1")
    P(f"buffer_atomic_add_x2 {vr(vDum+4,2)}, off, s[88:91], s{sQuad} sc1")
    P("s_mov_b64 exec, -1")
    P("attn_noregB:")
    P.extend(kv0_dma())
    if 'nobwait' not in EXP:
        P(f"s_cmp_lg_u32 s{sWave}, 0")
        P("s_cbranch_scc1 attn_bgo")
        P("s_sleep 48")
        P(reg_load(vDum + 6))
        P("s_waitcnt vmcnt(0)")
        reg_eval(P, vDum + 6, "attn_brg")
        P(f"s_add_u32 s{sA2}, s{sRec}, s{sQb}")
        P("attn_poll:")
        P("s_sleep 16")
        P(f"buffer_load_ubyte v{vDum+2}, off, s[20:23], s{sA2} offset:64 sc1")
        P("s_waitcnt vmcnt(0)")
        P(f"v_readfirstlane_b32 s{sA}, v{vDum+2}")
        P(f"s_cmp_eq_u32 s{sA}, 1")
        P("s_cbranch_scc0 attn_poll")
        P("attn_bgo:")
        P("s_barrier")
    P.extend(w_dma()); P.extend(x_dma()); P.extend(w_dma())
    P("s_branch attn_common")
    P("attn_isA:")
    P.extend(w_dma()); P.extend(x_dma()); P.extend(w_dma())
    if 'notouch' not in EXP:
        P(f"v_min_u32 v{vTx}, 20, v{L}")
        P(f"v_lshlrev_b32 v{vTx}, 7, v{vTx}")
        P(f"s_lshl_b32 s{sA}, s{sQb}, 2")
        P(f"s_add_u32 s{sA}, s{sA}, s{sWave}")
        P(f"s_mul_i32 s{sA}, s{sA}, {81*32}")
        P(f"s_and_b32 s{sA}, s{sA}, 0xffffff80")
        P(f"s_add_u32 s{sA}, s{sA}, s{sRV}")
        P(f"buffer_load_dword v{vDum}, v{vTx}, s[8:11], s{sA} offen {TF}")
        P(f"v_lshrrev_b32 v{vTw}, 1, v{L}")
        P(f"v_lshlrev_b32 v{vTw}, 13, v{vTw}")
        P(f"v_and_b32 v{vTx}, 1, v{L}")
        P(f"v_lshl_add_u32 v{vTw}, v{vTx}, 7, v{vTw}")
        P(f"s_and_b32 s{sA}, s{sB}, 1")
        P(f"s_lshl_b32 s{sA}, s{sA}, 2")
        P(f"s_add_u32 s{sA}, s{sA}, s{sWave}")
        P(f"s_mul_i32 s{sA}, s{sA}, {72*8192}")
        P(f"s_add_u32 s{sA}, s{sA}, s{sXend}")
        P(f"buffer_load_dword v{vDum+1}, v{vTw}, s[12:15], s{sA} offen {TF}")
        P(f"s_add_u32 s{sA}, s{sA}, {32*8192}")
        P(f"buffer_load_dword v{vDum+2}, v{vTw}, s[12:15], s{sA} offen {TF}")
        P(f"v_min_u32 v{vTw}, {7*8192+128}, v{vTw}")
        P(f"s_add_u32 s{sA}, s{sA}, {32*8192}")
        P(f"buffer_load_dword v{vDum+3}, v{vTw}, s[12:15], s{sA} offen {TF}")
    P(f"s_cmp_lg_u32 s{sWave}, 3")
    P("s_cbranch_scc1 attn_noregA")
    P(f"s_lshl_b64 s[{sA}:{sA+1}], 1, s{sXcc}")
    P(f"v_mov_b32 v{vDum+4}, s{sA}")
    P(f"v_mov_b32 v{vDum+5}, s{sA+1}")
    P("s_mov_b64 exec, 1")
    P(f"buffer_atomic_add_x2 {vr(vDum+4,2)}, off, s[88:91], s{sQuad} sc1")
    P("s_mov_b64 exec, -1")
    P("attn_noregA:")
    P("attn_common:")
    for i in range(216, 220): P(f"v_mov_b32 v{i}, 0")
    P(f"s_cmp_eq_u32 s{sWave}, 3")
    P(f"s_cselect_b32 s{sKVm0}, {4*1056}, 0")
    P(f"s_cselect_b32 s{sA}, {8192 + 1024}, {8192 // 1024}")
    P(f"s_cselect_b32 s{sA}, s{sA}, 0x2000")
    P(f"s_add_u32 s{sKVoff}, s{sKVoff}, s{sA}")
    P(f"s_lshl_b32 s{sT0}, s{sWave}, 1")
    P(f"s_add_u32 s{sT0}, s{sT0}, 1")
    P(f"s_cmp_eq_u32 s{sWave}, 0")
    P(f"s_cselect_b32 s{sT0}, 0, s{sT0}")
    P(f"s_add_u32 s{sXdel}, s{sWave}, 2")
    P(f"s_lshl_b32 s{sXdel}, s{sXdel}, 11")
    P(f"v_and_b32 v{vT2}, 7, v{L}")
    P(f"v_mul_u32_u24 v{vKa0}, 1056, v{vT2}")
    P(f"v_bfe_u32 v{vT2}, v{L}, 3, 1")
    P(f"v_lshl_add_u32 v{vKa0}, v{vT2}, 8, v{vKa0}")
    P(f"v_lshl_add_u32 v{vKa0}, v{vT0}, 4, v{vKa0}")
    P(f"v_bfe_u32 v{vT2}, v{L}, 2, 3")
    P(f"v_lshrrev_b32 v{vT3}, 5, v{L}")
    P(f"v_mul_u32_u24 v{vVa0}, 1056, v{vT2}")
    P(f"v_and_b32 v{vT2}, 3, v{L}")
    P(f"v_lshl_add_u32 v{vVa0}, v{vT2}, 3, v{vVa0}")
    P(f"v_lshl_add_u32 v{vWa0}, v{vT3}, 9, v{vVa0}")
    P(f"v_add_u32 v{vWa0}, {WBASE}, v{vWa0}")
    P(f"v_lshl_add_u32 v{vVa0}, v{vT3}, 8, v{vVa0}")
    P(f"v_lshrrev_b32 v{vT2}, 1, v{vT1}")
    P(f"v_xor_b32 v{vT2}, v{vT2}, v{vT0}")
    P(f"v_lshlrev_b32 v{vXa00}, 7, v{vT1}")
    P(f"v_lshl_add_u32 v{vXa00}, v{vT2}, 4, v{vXa00}")
    P(f"s_lshl_b32 s{sA}, s{sT0}, 11")
    P(f"s_add_u32 s{sA}, s{sA}, {XBASE}")
    P(f"v_add_u32 v{vXa00}, s{sA}, v{vXa00}")
    P(f"v_xor_b32 v{vXa01}, 64, v{vXa00}")
    assert XBASE % 128 == 0
    P(f"s_mul_i32 s{sOoff}, s{sB}, 9")
    P(f"s_add_u32 s{sOoff}, s{sOoff}, s{sT0}")
    P(f"s_lshl_b32 s{sOoff}, s{sOoff}, 7")
    P(f"s_lshl_b32 s{sA}, s{sHead}, 2")
    P(f"s_add_u32 s{sOoff}, s{sOoff}, s{sA}")
    P(f"s_lshl_b32 s{sOoff}, s{sOoff}, 10")
    P(f"v_lshlrev_b32 v{vT3}, 4, v{L}")
    P(f"v_add_u32 v{vOst}, 0x10000, v{vT3}")
    P(f"s_mov_b32 s{sScale}, {hex(f2u(QSCALE))}")
    P(f"s_mov_b32 s{sScale+1}, {hex(f2u(QSCALE))}")
    P(f"s_mov_b32 s{sWR}, 0")
    P(f"s_mov_b32 s{sXR}, 0")
    for i in range(0, 96, 2): P(f"v_mov_b64 {vr(vO+i,2)}, 0")
    for i in range(0, 32, 2): P(f"v_mov_b64 {vr(KV(0)+i,2)}, 0")
    for i in range(0, 12, 2): P(f"v_mov_b64 {vr(BB(1,0)+i,2)}, 0")
    P(f"s_cmp_eq_u32 s{sWave}, 2")
    P("s_cbranch_scc1 attn_wk")
    P(f"s_cmp_lg_u32 s{sWave}, 0")
    P("s_cbranch_scc1 attn_wv")
    P("attn_w0:")
    return P

def finish_attn(P):
    P("attn_fin:")
    if STAMPS:
        P("s_waitcnt vmcnt(0)")
        if FUSE: stamp(P, 7)
        else:
            stamp(P, 4)
            P("s_sub_u32 s74, s80, s78")
            P("s_add_u32 s74, s74, s60")
            P("s_addc_u32 s75, s61, 0")
        P(f"s_cmp_lg_u32 s{sWave}, 0")
        P("s_cbranch_scc1 attn_end")
        P(f"s_lshl_b32 s{sA}, s2, 6")
        P(f"s_add_u32 s{sA}, s{sA}, {WS_STAMP + 0x40000}")
        P("v_mov_b32 v8, 0")
        P(f"v_cmp_eq_u32 vcc, 0, v{vLane}")
        P("s_and_saveexec_b64 s[76:77], vcc")
        for i in range(8):
            P(f"v_mov_b32 v4, s{sSt+2*i}\nv_mov_b32 v5, s{sSt+2*i+1}")
            P(f"buffer_store_dwordx2 v[4:5], v8, s[20:23], s{sA} offen offset:{8*i}")
            P("s_nop 1")
    P("attn_end:")
    P("s_endpgm")

def build_attn():
    P = gen_attn()
    attn_wave(P, 'w0')
    P("attn_wk:")
    attn_wave(P, 'wk')
    P("attn_wv:")
    attn_wave(P, 'wv')
    if FUSE:
        oproj(P, True)
        oproj(P, False)
    finish_attn(P)
    return P

if __name__ == "__main__":
    import gen_oproj
    from gen_h2 import write
    kernels = [("attn_kernel", build_attn(), 256, (512, 256, LDS))]
    if 'only1' not in EXP and not FUSE: kernels += gen_oproj.build()
    write(sys.argv[1], kernels)
```
